```python
import torch

def _softmax(x, axis=-1):
    return torch.softmax(x, dim=axis)

def _gelu(x):
    return torch.nn.functional.gelu(x, approximate='tanh')

def _silu(x):
    return torch.nn.functional.silu(x)

def _sigmoid(x):
    return torch.sigmoid(x)

def _layernorm(x, axis=-1, eps=1e-05):
    m = x.mean(dim=axis, keepdim=True)
    v = x.var(dim=axis, keepdim=True, unbiased=False)
    return (x - m) / torch.sqrt(v + eps)

def _scatter_add(tgt, idx, src, axis=0):
    return tgt.clone().index_add_(axis, idx, src)

def _segment_sum(src, seg, n):
    out = torch.zeros((n,) + src.shape[1:], dtype=src.dtype)
    return out.index_add_(0, seg, src)

def _pad(x, pw):
    flat = tuple((v for pair in reversed(pw) for v in pair))
    return torch.nn.functional.pad(x, flat)
kernel_name = 'recurrent_scan__linear_attn_block__mixer_gmlp__prompt'

def setup_inputs():

    _w = lambda a: (lambda t: t.to(torch.bfloat16) if t.is_floating_point() else t)(torch.as_tensor(a))

    def _A_setup():
        B, S, D = (1, 2048, 512)
        return {'x': _w((lambda *s: torch.randn(*s, dtype=torch.bfloat16) * 0.05)(B, S, D)), 'wqkv': _w((lambda *s: torch.randn(*s, dtype=torch.bfloat16) * 0.05)(D, 3 * D)), 'wo': _w((lambda *s: torch.randn(*s, dtype=torch.bfloat16) * 0.05)(D, D))}
    _A_in = _A_setup()

    def _B_setup():
        B, S, D, F = (1, 2048, 512, 1376)
        Fh = F // 2
        return {'x': _w((lambda *s: torch.randn(*s, dtype=torch.bfloat16) * 0.05)(B, S, D)), 'w_in': _w((lambda *s: torch.randn(*s, dtype=torch.bfloat16) * 0.4)(D, 2 * Fh)), 'w_sp': _w(0.01 * (lambda *s: torch.randn(*s, dtype=torch.bfloat16) * 0.4)(S, S)), 'b_sp': _w(1.0 + 0.01 * (lambda *s: torch.randn(*s, dtype=torch.bfloat16) * 0.05)(S)), 'w_out': _w((lambda *s: torch.randn(*s, dtype=torch.bfloat16) * 0.05)(Fh, D))}
    _B_in = _B_setup()
    return {'A_x': _A_in['x'], 'A_wqkv': _A_in['wqkv'], 'A_wo': _A_in['wo'], 'B_x': _B_in['x'], 'B_w_in': _B_in['w_in'], 'B_w_sp': _B_in['w_sp'], 'B_b_sp': _B_in['b_sp'], 'B_w_out': _B_in['w_out']}

def reference(A_x, A_wqkv, A_wo, B_x, B_w_in, B_w_sp, B_b_sp, B_w_out):

    def _A_ref(x, wqkv, wo):
        B, S, D = x.shape
        H = 32
        Dh = D // H
        qkv = (lambda x, *d: x.permute(*d))((x @ wqkv).reshape(B, S, 3, H, Dh), 2, 0, 3, 1, 4)
        q, k, v = (qkv[0], qkv[1], qkv[2])
        phi = lambda t: torch.where(t > 0, t + 1, torch.exp(t)) + 1e-06
        pq, pk = (phi(q), phi(k))
        kv = torch.einsum('bhsd,bhse->bhde', pk, v)
        z = torch.einsum('bhsd->bhd', pk)
        num = torch.einsum('bhqd,bhde->bhqe', pq, kv)
        den = torch.einsum('bhqd,bhd->bhq', pq, z)[..., None] + 1e-06
        o = num / den
        return (lambda x, *d: x.permute(*d))(o, 0, 2, 1, 3).reshape(B, S, D) @ wo

    def _B_ref(x, w_in, w_sp, b_sp, w_out):
        B, S, D = x.shape
        F = w_in.shape[-1]
        Fh = F // 2
        z = _gelu(torch.einsum('bsd,df->bsf', x, w_in))
        z1 = z[..., :Fh].clone()
        z2 = _layernorm(z[..., Fh:], axis=-1)
        g = torch.einsum('ts,bsf->btf', w_sp, z2) + b_sp[None, :, None]
        return torch.einsum('bsf,fd->bsd', z1 * g, w_out)
    x = A_x
    xn = _layernorm(x, axis=-1)
    s = _A_ref(xn, A_wqkv, A_wo)
    g = _silu(_B_ref(xn, B_w_in, B_w_sp, B_b_sp, B_w_out))
    return x + s * g
```

```python
import re

A0 = 256
S0 = 1000
VCC = S0 + 106
M0 = S0 + 124
EXEC = S0 + 126
SCC = 1300

_reg = re.compile(r'^(-|\|)?([vas])(\d+)\|?$')
_rng = re.compile(r'^(-)?([vas])\[(\d+):(\d+)\]$')

def regs_of(tok):
    tok = tok.strip()
    m = _reg.match(tok)
    if m:
        b = {'v': 0, 'a': A0, 's': S0}[m.group(2)]
        return {b + int(m.group(3))}
    m = _rng.match(tok)
    if m:
        b = {'v': 0, 'a': A0, 's': S0}[m.group(2)]
        return set(range(b + int(m.group(3)), b + int(m.group(4)) + 1))
    if tok == 'vcc': return {VCC, VCC + 1}
    if tok == 'vcc_lo': return {VCC}
    if tok == 'm0': return {M0}
    if tok == 'exec': return {EXEC, EXEC + 1}
    return set()

TRANS = ('v_exp_f32', 'v_rcp_f32', 'v_rsq_f32', 'v_log_f32', 'v_sqrt_f32')
NODST_S = ('s_cmp', 's_waitcnt', 's_barrier', 's_branch', 's_cbranch', 's_nop', 's_endpgm', 's_setprio', 's_sleep', 's_bitcmp')

class I:
    __slots__ = ('text', 'op', 'kind', 'wr', 'rd', 'srcC', 'srcAB', 'tok', 'cost', 'wide', 'data')
    def __init__(self, text, tok=None):
        self.text = text; self.tok = tok
        self.wr = set(); self.rd = set(); self.srcC = set(); self.srcAB = set(); self.wide = False; self.data = set()
        t = text.split(';')[0].strip()
        if t.endswith(':'):
            self.op = 'label'; self.kind = 'label'; self.cost = 0; return
        if t.startswith('.'):
            self.op = 'directive'; self.kind = 'directive'; self.cost = 0; return
        sp = t.split(None, 1)
        op = sp[0]; self.op = op
        rest = sp[1] if len(sp) > 1 else ''
        args = [a.strip() for a in re.split(r',(?![^\[]*\])', rest)] if rest else []
        mods = ''
        if args:
            parts = args[-1].split()
            if len(parts) > 1:
                args[-1] = parts[0]; mods = ' '.join(parts[1:])
        base = re.sub(r'_(e32|e64|dpp|sdwa)$', '', op)
        mo = re.search(r'offset:(-?\d+)', t)
        if mo:
            lim = 4095 if op.startswith('buffer_') else 65535
            assert 0 <= int(mo.group(1)) <= lim, 'offset out of range: ' + text
        self.cost = 1
        R = lambda i: regs_of(args[i]) if i < len(args) else set()
        allr = lambda s: set().union(*[regs_of(a) for a in args[s:]]) if len(args) > s else set()
        if op == 'WAIT':
            self.kind = 'waittok'; self.cost = 0; self.tok = rest.strip(); return
        if op.startswith('v_mfma'):
            self.kind = 'mfma32' if '32x32' in op else 'mfma16'
            self.wr = R(0); self.srcAB = R(1) | R(2); self.srcC = R(3); self.rd = self.srcAB | self.srcC; self.cost = 2
        elif op.startswith('v_'):
            self.kind = 'valu'
            self.wr = R(0); self.rd = allr(1)
            if base in TRANS: self.kind = 'trans'; self.cost = 2
            elif base.startswith('v_pk_'): self.kind = 'pk'
            elif base.startswith('v_dot2'): self.kind = 'dot'; self.rd |= self.wr
            elif base.startswith('v_permlane'): self.kind = 'perm'; self.wr = R(0) | R(1); self.rd = R(0) | R(1); self.cost = 2
            elif base in ('v_readfirstlane_b32', 'v_readlane_b32'): self.kind = 'rdlane'
            elif base == 'v_writelane_b32': self.rd |= self.wr
            if base in ('v_fmac_f32',): self.rd |= self.wr
            if op.endswith('_dpp') or 'row_' in mods or 'quad_perm' in mods: self.kind = 'dpp'; self.rd |= self.wr
            self.rd |= {EXEC, EXEC + 1}
        elif op.startswith('ds_read') :
            self.kind = 'ds_rd'; self.wr = R(0); self.rd = allr(1)
        elif op.startswith('ds_'):
            self.kind = 'ds_wr'; self.rd = allr(0)
        elif op.startswith('buffer_load'):
            if re.search(r'\blds\b', mods):
                self.kind = 'vm_dma'; self.rd = allr(0) | {M0}
            else:
                self.kind = 'vm_ld'; self.wr = R(0); self.rd = allr(1)
        elif op.startswith('buffer_store'):
            self.kind = 'vm_st'; self.rd = allr(0); self.data = R(0); self.wide = op.endswith('x4') or op.endswith('x3')
        elif op.startswith('s_load') or op.startswith('s_mem'):
            self.kind = 'smem'; self.wr = R(0); self.rd = allr(1)
        elif op == 's_waitcnt': self.kind = 'wait'
        elif op == 's_barrier': self.kind = 'barrier'
        elif op == 's_nop': self.kind = 'nop'
        elif op.startswith('s_branch') or op.startswith('s_cbranch') or op == 's_endpgm': self.kind = 'branch'
        elif op.startswith('s_'):
            self.kind = 'salu'
            if op.startswith(NODST_S): self.rd = allr(0)
            else: self.wr = R(0); self.rd = allr(1)
        else:
            raise ValueError('unknown instruction: ' + text)
    def states(self):
        if self.kind == 'nop': return int(self.text.split()[1], 0) + 1
        if self.kind in ('label', 'directive', 'waittok'): return 0
        return 1
    def __repr__(self): return self.text

VALUISH = ('valu', 'trans', 'pk', 'dot', 'perm', 'rdlane', 'dpp')
isv = lambda r: r < S0
def vset(s): return {r for r in s if r < S0}
def sset(s): return {r for r in s if S0 <= r < SCC}

def need_states(p, c):
    n = 0
    pk, ck = p.kind, c.kind
    if pk in VALUISH:
        w = vset(p.wr); sw = sset(p.wr)
        if ck in ('mfma32', 'mfma16') and w & c.rd: n = max(n, 2)
        if ck == 'perm' and w & c.rd: n = max(n, 2)
        if ck == 'dpp' and w & c.rd: n = max(n, 2)
        if ck == 'rdlane' and w & c.rd: n = max(n, 1)
        if pk == 'trans' and ck in VALUISH and ck != 'trans' and w & c.rd: n = max(n, 1)
        if pk == 'trans' and ck == 'trans' and w & c.rd: n = max(n, 1)
        if pk == 'dot':
            if ck == 'dot':
                if w & (c.rd - c.wr): n = max(n, 3)
            elif w & (c.rd | c.wr): n = max(n, 3)
        if sw:
            if ck in VALUISH and sw & c.rd: n = max(n, 2 if ck != 'rdlane' else 4)
            if ck.startswith('vm_') and sw & c.rd: n = max(n, 5)
            if ck in ('salu', 'branch') and sw & (c.rd | ({VCC, VCC+1} if 'vcc' in c.op else set())): n = max(n, 1)
    if pk in ('mfma32', 'mfma16'):
        big = pk == 'mfma32'
        w = p.wr
        if ck in ('mfma32', 'mfma16'):
            if w & c.srcAB: n = max(n, 12 if big else 8)
            if w & c.srcC:
                if not (ck == pk and c.srcC == w): n = max(n, 10 if big else 6)
            elif w & c.wr: n = max(n, 12 if big else 8)
        elif ck in VALUISH or ck in ('ds_rd', 'ds_wr', 'vm_ld', 'vm_st', 'vm_dma'):
            if w & (c.rd | c.wr): n = max(n, 12 if big else 8)
        if ck in VALUISH and p.srcC & c.wr: n = max(n, 7 if big else 3)
    if pk == 'salu' and M0 in p.wr and ck == 'vm_dma': n = max(n, 1)
    if pk == 'vm_st' and p.wide and p.data & c.wr:
        n = max(n, 2 if ck in VALUISH else 1)
    return n

class Seg:
    def __init__(self, vmq=None, hist=None):
        self.out = []
        self.vmq = list(vmq or [])
        self.lgq = []
        self.hist = list(hist or [])
        self.nstall = 0
    def _emit(self, ins):
        need = 0; dist = 0
        for p in reversed(self.hist):
            if dist >= 20: break
            k = need_states(p, ins)
            if k > dist: need = max(need, k - dist)
            dist += p.states()
        while need > 0:
            k = min(need, 16)
            nop = I(f's_nop {k-1}'); self.out.append(nop); self.hist.append(nop); need -= k; self.nstall += k
        self.out.append(ins); self.hist.append(ins)
        if len(self.hist) > 64: self.hist = self.hist[-40:]
    def _wait(self, vm=None, lg=None):
        parts = []
        if vm is not None:
            vm = min(vm, 63); parts.append(f'vmcnt({vm})'); self.vmq = self.vmq[len(self.vmq) - vm:] if vm else []
        if lg is not None:
            lg = min(lg, 15); parts.append(f'lgkmcnt({lg})'); self.lgq = self.lgq[len(self.lgq) - lg:] if lg else []
        self._emit(I('s_waitcnt ' + ' '.join(parts)))
    def add(self, ins):
        if isinstance(ins, str): ins = I(ins)
        k = ins.kind
        if k == 'waittok':
            vm = lg = None
            toks = ins.tok.split()
            for i, (t, _) in enumerate(self.vmq):
                if t in toks: vm = len(self.vmq) - 1 - i
            for i, (t, _) in enumerate(self.lgq):
                if t in toks: lg = len(self.lgq) - 1 - i
            if vm is not None or lg is not None: self._wait(vm, lg)
            return
        if k == 'wait':
            m = re.search(r'vmcnt\((\d+)\)', ins.text); vm = int(m.group(1)) if m else None
            m = re.search(r'lgkmcnt\((\d+)\)', ins.text); lg = int(m.group(1)) if m else None
            if vm is not None: self.vmq = self.vmq[max(0, len(self.vmq) - vm):] if vm else []
            if lg is not None: self.lgq = self.lgq[max(0, len(self.lgq) - lg):] if lg else []
            self._emit(ins); return
        touch = ins.rd | ins.wr
        vm = lg = None
        for i, (t, d) in enumerate(self.vmq):
            if d & touch: vm = len(self.vmq) - 1 - i
        for i, (t, d) in enumerate(self.lgq):
            if d & touch: lg = len(self.lgq) - 1 - i
        if vm is not None or lg is not None: self._wait(vm, lg)
        self._emit(ins)
        if k in ('vm_ld', 'vm_st', 'vm_dma'): self.vmq.append((ins.tok, set(ins.wr)))
        elif k in ('ds_rd', 'ds_wr'): self.lgq.append((ins.tok, set(ins.wr)))
        elif k == 'smem':
            self._wait(None, 0)
    def extend(self, lst):
        for x in lst: self.add(x)
    def text(self):
        return '\n'.join(('' if x.kind == 'label' else '  ') + x.text for x in self.out)

def T(text, tok): return I(text, tok)

def merge(main, fill, budget=6.0, start=0):
    main = [I(x) if isinstance(x, str) else x for x in main]
    fill = [I(x) if isinstance(x, str) else x for x in fill]
    out = []; fi = 0; nm = 0; i = 0
    while i < len(main):
        ins = main[i]; out.append(ins); i += 1
        if ins.kind in ('mfma32', 'mfma16'):
            used = 0
            while i < len(main) and main[i].kind not in ('mfma32', 'mfma16'):
                out.append(main[i]); used += main[i].cost; i += 1
            nm += 1
            if nm > start:
                b = budget if ins.kind == 'mfma32' else budget / 3
                while fi < len(fill) and used + fill[fi].cost <= b + 1e-9:
                    out.append(fill[fi]); used += fill[fi].cost; fi += 1
    return out, fill[fi:]
```

```python
import sys, os, struct
from ir import *

STAMPS = int(os.environ.get('STAMPS', '0'))
NAME = 'recurrent_scan__linear_attn_block__mixer_gmlp__prompt_kernel'

def f2u(x): return struct.unpack('<I', struct.pack('<f', x))[0]
def fx(x): return '0x%08x' % f2u(x)
def V(a, n=1): return f'v{a}' if n == 1 else f'v[{a}:{a+n-1}]'
def A(a, n=1): return f'a{a}' if n == 1 else f'a[{a}:{a+n-1}]'
def S(a, n=1): return f's{a}' if n == 1 else f's[{a}:{a+n-1}]'

WS_EPOCH = 0
WS_F1 = 0x1000; WS_F2 = 0x4000; WS_F3 = 0x8000; WS_F4 = 0x9000; WS_F5 = 0xD000
WS_STATS = 0x20000; WS_KVF = 0x80000; WS_KVP = 0x100000
WS_PQ = 0x200000; WS_O = 0x400000; WS_Z1 = 0x600000; WS_H = 0x900000; WS_Z2T = 0xC00000
WS_DBG = 0xF00000; WS_SIZE = 0x1000000
OOB = 0x7F000000
SPIN = int(os.environ.get('SPIN', '200000'))

SX, SWA, SWI, SSP, SWS, SWO, SWOUT, SOUT, SB, SDBG = [S(4 + 4 * i, 4) for i in range(10)]
sW, sRB, sG, sTB = 44, 45, 46, 47
sJ, sTag, sW4K, sT0, sT1, sT2, sCnt = 70, 71, 72, 73, 74, 75, 76
sXo, sSo1, sSo0 = 77, 78, 79
sWb = [80, 81, 82]
sEps2, sL2e2 = 84, 86
sMaskLo = 88
sST = 90
sA, sB_, sC, sD = 91, 92, 93, 94
sMk = [95, 96, 97, 98]
sFirst = 99
sStamp = 48
STAMP_REGS = list(range(50, 64))

SLOT = 16384
SC = 131072
L_CS = SC; L_XS = SC + 1024; L_TZ = SC + 2048
L_WOUT = 65536; L_RED = 139264
LDS_BYTES = 163840

C0 = -2.0 * 1.4426950408889634 * 0.7978845608028654
C1 = C0 * 0.044715
LOG2E = 1.4426950408889634

slow_blocks = []
stamp_n = [0]
def stamp(idx):
    if not STAMPS: return []
    r = STAMP_REGS[idx]
    return [I('s_memrealtime s[48:49]'), f's_mov_b32 s{r}, s48']

def poll_check(name, loads, cmp_ins):
    blk = [f'SLOW_{name}:', f's_mov_b32 s{sCnt}, {SPIN}', f'SLOWL_{name}:'] + loads + ['s_waitcnt vmcnt(0)'] + cmp_ins + \
          ['s_nop 1', f's_cbranch_vccz RET_{name}', f's_sub_u32 s{sCnt}, s{sCnt}, 1', f's_cmp_lg_u32 s{sCnt}, 0',
           f's_cbranch_scc1 SLOWL_{name}', f's_branch RET_{name}']
    sg = Seg(); sg.extend(blk); slow_blocks.append(sg.text())
    return cmp_ins + [f's_cbranch_vccnz SLOW_{name}', f'RET_{name}:']

def post_flag(vtmp, soff_expr_instrs, sreg):
    return soff_expr_instrs + [f'v_mov_b32 v{vtmp}, s{sTag}', 's_mov_b64 exec, 1',
            f'buffer_store_dword v{vtmp}, off, {SWS}, s{sreg} sc1', 's_mov_b64 exec, -1']

class P1: pass
p = P1()
_n = [1]
def alloc(n, align=1):
    while _n[0] % align: _n[0] += 1
    r = _n[0]; _n[0] += n; return r
p.L = alloc(1); p.L16 = alloc(1); p.E = alloc(1)
p.offX = alloc(4); p.offS = p.offX; p.offWa = alloc(4); p.offWb = alloc(4)
p.xrd = [alloc(4), alloc(4)]
p.tr = [alloc(2), alloc(2)]; p.cs = [alloc(2), alloc(2)]
p.aXS = alloc(1); p.aCSb = alloc(1); p.aCSa = alloc(1); p.aTZw = alloc(1); p.aTZr = alloc(1); p.aST = alloc(1); p.ones = alloc(1)
p.st = alloc(4, 2)
p.k01 = alloc(2, 2)
p.k23 = alloc(2, 2)
p.k45 = alloc(2, 2)
p.wf = alloc(24, 4); p.csf = alloc(8, 4); p.csacc = alloc(4, 4); p.sel = alloc(8, 4)
p.acc = alloc(96, 4)
p.pk = alloc(16, 4)
p.t = alloc(48, 4)
assert _n[0] <= 256, _n[0]
NEGM, RR, IR_, RC0, R3C1 = p.k01, p.k01 + 1, p.k23, p.k23 + 1, p.k45
def acc(pc, T_, r=0): return p.acc + 32 * pc + 16 * T_ + r

def bc(reg):
    return (V(reg & ~1, 2), reg & 1)
def pk(op, d, srcs, neg=None):
    txt = []; lo = []; hi = []
    for s in srcs:
        if isinstance(s, tuple): txt.append(s[0]); lo.append(s[1]); hi.append(s[1])
        elif isinstance(s, str): txt.append(s); lo.append(0); hi.append(1)
        else: txt.append(V(s, 2)); lo.append(0); hi.append(1)
    m = f' op_sel:[{",".join(map(str, lo))}] op_sel_hi:[{",".join(map(str, hi))}]'
    return f'{op} {V(d, 2)}, {", ".join(txt)}{m}'

def prologue():
    o = []; a = o.append
    a(f'v_and_b32 v{p.L}, 63, v0')
    a(f'v_lshrrev_b32 v{p.t}, 6, v0')
    a(f'v_readfirstlane_b32 s{sW}, v{p.t}')
    L = p.L; t = p.t
    a(f'v_lshrrev_b32 v{t+1}, 3, v{L}')
    a(f'v_and_b32 v{t+2}, 7, v{L}')
    a(f'v_lshrrev_b32 v{t+3}, 4, v{L}')
    a(f'v_xor_b32 v{t+4}, v{t+2}, v{t+3}')
    a(f'v_lshlrev_b32 v{t+4}, 4, v{t+4}')
    a(f'v_lshl_add_u32 v{p.offX}, v{t+1}, 10, v{t+4}')
    a(f'v_xor_b32 v{t+5}, 64, v{p.offX}')
    a(f'v_add_u32 v{p.offX+1}, 7168, v{t+5}')
    a(f'v_add_u32 v{p.offX+2}, {2*7168}, v{p.offX}')
    a(f'v_add_u32 v{p.offX+3}, {3*7168}, v{t+5}')
    a(f's_and_b32 s{sT0}, s2, 1')
    a(f's_bfe_u32 s{sT1}, s2, 0x20001')
    a(f's_bfe_u32 s{sT2}, s2, 0x30003')
    a(f's_lshl_b32 s{sRB}, s{sT0}, 3'); a(f's_add_u32 s{sRB}, s{sRB}, s{sT2}')
    a(f's_lshl_b32 s{sTB}, s{sT1}, 3'); a(f's_add_u32 s{sTB}, s{sTB}, s{sT2}')
    a(f's_lshr_b32 s{sT2}, s2, 6')
    a(f's_lshl_b32 s{sG}, s{sT2}, 2'); a(f's_add_u32 s{sG}, s{sG}, s{sT1}')
    a(f's_lshl_b32 s{sJ}, s{sT0}, 2'); a(f's_add_u32 s{sJ}, s{sJ}, s{sT2}')
    a(f's_lshl_b32 s{sW4K}, s{sW}, 12')
    a(f's_lshl_b32 s{sST}, s{sRB}, 2'); a(f's_add_u32 s{sST}, s{sST}, s{sW}')
    a(f's_lshl_b32 s{sXo}, s{sST}, 15')
    a(f'v_and_b32 v{t+6}, 1, v{t+3}')
    a(f'v_lshlrev_b32 v{t+6}, 2, v{t+6}')
    a(f'v_xor_b32 v{t+6}, v{t+6}, v{t+2}')
    a(f'v_lshlrev_b32 v{t+6}, 4, v{t+6}')
    a(f's_lshl_b32 s{sT0}, s{sW}, 5')
    a(f'v_add_u32 v{t+7}, s{sT0}, v{t+1}')
    a(f's_movk_i32 s{sT0}, 2752')
    a(f'v_mad_u32_u24 v{p.offWa}, v{t+7}, s{sT0}, v{t+6}')
    for i in range(1, 4): a(f'v_add_u32 v{p.offWa+i}, {i*(8*2752-1024)}, v{p.offWa}')
    return o, (t+1, t+4, t+6, t+7)

def srd(dst, ptr, nbytes):
    b = int(dst[2:].split(':')[0])
    return [f's_mov_b32 s{b}, s{ptr}', f's_mov_b32 s{b+1}, s{ptr+1}', f's_mov_b32 s{b+2}, {nbytes}', f's_mov_b32 s{b+3}, 0x20000']

def dma_item(kind, idx, slot, prog):
    o = [f's_add_u32 m0, s{sW4K}, {slot*SLOT}']
    if kind == 'X':
        off, rs = p.offX, SX; o.append(f's_add_u32 s{sT0}, s{sXo}, {idx*128}')
    elif kind == 'S':
        off, rs = p.offS, SSP
        o.append(f's_add_u32 s{sT0}, s{sSo1 if idx < 8 else sSo0}, {(idx & 7)*128}')
    else:
        pc, cc = idx >> 2, idx & 3
        win = (pc == 0 or prog == 'C')
        off, rs = (p.offWa, SWI) if win else (p.offWb, SWA)
        o.append(f's_add_u32 s{sT0}, s{sWb[pc]}, {cc*128*(2752 if win else 3072)}')
    for i in range(4):
        o.append(T(f'buffer_load_dwordx4 v{off+i}, {rs}, s{sT0} offen offset:{i*1024} lds', f'{kind}{idx}'))
    return o

def xs_reads(dst_fmt, slot):
    rg = slot >> 2
    return [f'ds_read_b128 {dst_fmt(j)}, v{p.xrd[rg]+j} offset:{(slot & 3)*SLOT}' for j in range(4)]

def consume_X_reads(q, slot, tmp):
    return [f'WAIT X{q}'] + xs_reads(lambda j: V(tmp + 4*j, 4), slot) + [T(x, f'xr{q}') for x in xs_reads(lambda j: A(16*q + 4*j, 4), slot)]
def consume_X_stats(tmp):
    o = []
    for r in range(16):
        k = 2 * (r & 1)
        o.append(f'v_dot2c_f32_bf16 v{p.st+k}, v{tmp+r}, v{p.ones}')
        o.append(f'v_dot2c_f32_bf16 v{p.st+k+1}, v{tmp+r}, v{tmp+r}')
    return o
def consume_S(i, slot):
    blk = 1 if i < 8 else 0
    base = 128 * blk + 16 * (i & 7)
    return [f'WAIT S{i}'] + [T(x, f'sr{i}') for x in xs_reads(lambda j: A(base + 4*j, 4), slot)]

WSLOT = {0: 2, 1: 5, 2: 0, 3: 4, 4: 6, 5: 2, 6: 5, 7: 0, 8: 4, 9: 6, 10: 2, 11: 5}
def w_reads(n, T_):
    c = n >> 3; s = WSLOT[c]; rg = s >> 2
    d = p.wf + 8 * (n % 3) + 4 * T_
    return [f'ds_read_b64_tr_b16 {V(d+2*rd, 2)}, v{p.tr[rg]+T_} offset:{(s & 3)*SLOT + (n & 7)*2048 + rd*512}' for rd in range(2)]
def cs_reads(c, f):
    s = WSLOT[c]; rg = s >> 2; kq, T_ = f >> 1, f & 1
    d = p.csf + 4 * (f & 1)
    return [f'ds_read_b64_tr_b16 {V(d+2*rd, 2)}, v{p.cs[rg]+T_} offset:{(s & 3)*SLOT + kq*2048 + rd*512}' for rd in range(2)]
def cs_mfma(c, f):
    T_ = f & 1
    cin = '0' if (c & 3) == 0 and f == 0 else V(p.csacc, 4)
    return f'v_mfma_f32_16x16x32_bf16 {V(p.csacc,4)}, {V(p.sel+4*T_,4)}, {V(p.csf+4*(f & 1),4)}, {cin}'
def main_mfma(n, T_, atype):
    pc = n >> 5; kk = n & 31
    d = V(acc(pc, T_), 16); w = V(p.wf + 8 * (n % 3) + 4 * T_, 4); x = A(4 * kk, 4)
    cin = '0' if kk == 0 else d
    return f'v_mfma_f32_32x32x16_bf16 {d}, {x}, {w}, {cin}' if atype else f'v_mfma_f32_32x32x16_bf16 {d}, {w}, {x}, {cin}'

def xstat_finalize():
    t = p.t + 40; o = []; a = o.append
    a(f'v_add_f32 v{p.st}, v{p.st}, v{p.st+2}')
    a(f'v_add_f32 v{p.st+1}, v{p.st+1}, v{p.st+3}')
    a(f'v_permlane32_swap_b32 v{p.st}, v{p.st+1}')
    a(f'v_add_f32 v{p.st}, v{p.st}, v{p.st+1}')
    a(f'v_mov_b32 v{p.st+1}, v{p.st}')
    a(f'v_permlane32_swap_b32 v{p.st}, v{p.st+1}')
    a(f'v_mul_f32 v{NEGM}, {fx(-1/512)}, v{p.st}')
    a(f'v_mul_f32 v{t}, {fx(1/512)}, v{p.st+1}')
    a(f'v_fma_f32 v{t}, -v{NEGM}, v{NEGM}, v{t}')
    a(f'v_max_f32 v{t}, 0, v{t}')
    a(f'v_add_f32 v{t}, {fx(1e-5)}, v{t}')
    a(f'v_rsq_f32 v{RR}, v{t}')
    a(f'v_sqrt_f32 v{IR_}, v{t}')
    a(f'v_mul_f32 v{RC0}, {fx(C0)}, v{RR}')
    a(f'v_mul_f32 v{t}, v{RR}, v{RR}')
    a(f'v_mul_f32 v{t+1}, {fx(C1)}, v{RR}')
    a(f'v_mul_f32 v{R3C1}, v{t}, v{t+1}')
    return o
def xstat_to_lds():
    t = p.t + 40
    return [f'v_cmp_gt_u32 vcc, 32, v{p.L}', f'v_cndmask_b32 v{t}, v{RR}, v{NEGM}, vcc',
            f'v_lshlrev_b32 v{t+1}, 2, v{p.L}', f'v_add_u32 v{t+1}, s{sA}, v{t+1}', f'ds_write_b32 v{t+1}, v{t}']

def csb_reads(pc, T_, dst):
    return [f'ds_read_b128 {V(dst+4*i,4)}, v{p.aCSb} offset:{pc*256 + T_*128 + i*32}' for i in range(4)]

def gelu(pc, T_, hp, cs, tmp, mode, st=None):
    o = []; a = o.append; b = acc(pc, T_, 8 * hp)
    if mode == 'pk':
        R4 = range(0, 8, 2)
        for r in R4: a(pk('v_pk_fma_f32', b+r, [cs+r, bc(NEGM), b+r]))
        for r in R4: a(pk('v_pk_mul_f32', tmp+r, [b+r, b+r]))
        for r in R4: a(pk('v_pk_fma_f32', tmp+r, [tmp+r, bc(R3C1), bc(RC0)]))
        for r in R4: a(pk('v_pk_mul_f32', tmp+r, [tmp+r, b+r]))
        for r in range(8): a(f'v_exp_f32 v{tmp+r}, v{tmp+r}')
        for r in R4: a(pk('v_pk_fma_f32', tmp+r, [tmp+r, bc(IR_), bc(IR_)]))
        for r in range(8): a(f'v_rcp_f32 v{tmp+r}, v{tmp+r}')
        for r in R4: a(pk('v_pk_mul_f32', b+r, [b+r, tmp+r]))
        if st:
            s1, s2, first = st
            for r in R4:
                if first and r == 0:
                    a(f'v_mov_b64 {V(s1,2)}, {V(b,2)}'); a(pk('v_pk_mul_f32', s2, [b, b]))
                else:
                    a(pk('v_pk_add_f32', s1, [s1, b+r])); a(pk('v_pk_fma_f32', s2, [b+r, b+r, s2]))
    else:
        R8 = range(8)
        for r in R8: a(f'v_fmac_f32 v{b+r}, v{cs+r}, v{NEGM}')
        for r in R8: a(f'v_mul_f32 v{tmp+r}, v{b+r}, v{b+r}')
        for r in R8: a(f'v_fma_f32 v{tmp+r}, v{tmp+r}, v{R3C1}, v{RC0}')
        for r in R8: a(f'v_mul_f32 v{tmp+r}, v{tmp+r}, v{b+r}')
        for r in R8: a(f'v_exp_f32 v{tmp+r}, v{tmp+r}')
        for r in R8: a(f'v_fma_f32 v{tmp+r}, v{tmp+r}, v{IR_}, v{IR_}')
        for r in R8: a(f'v_rcp_f32 v{tmp+r}, v{tmp+r}')
        for r in R8: a(f'v_mul_f32 v{b+r}, v{b+r}, v{tmp+r}')
    return o
def pack8(dst, src): return [f'v_cvt_pk_bf16_f32 v{dst+i}, v{src+2*i}, v{src+2*i+1}' for i in range(4)]

def phi_from_u(b, rsrc, tmp, mode):
    o = []; a = o.append
    if mode == 'pk':
        R4 = range(0, 8, 2)
        for r in R4: a(pk('v_pk_fma_f32', b+r, [b+r, rsrc(r), S(sEps2, 2)]))
        for r in R4: a(pk('v_pk_mul_f32', tmp+r, [b+r, S(sL2e2, 2)]))
        for r in range(8): a(f'v_exp_f32_e64 v{tmp+r}, v{tmp+r} clamp')
        for r in range(8): a(f'v_max_f32 v{b+r}, s{sEps2}, v{b+r}')
        for r in R4: a(pk('v_pk_add_f32', b+r, [b+r, tmp+r]))
    else:
        R8 = range(8)
        for r in R8: a(f'v_fma_f32 v{b+r}, v{b+r}, v{rsrc(r)}, s{sEps2}')
        for r in R8: a(f'v_mul_f32 v{tmp+r}, s{sL2e2}, v{b+r}')
        for r in R8: a(f'v_exp_f32_e64 v{tmp+r}, v{tmp+r} clamp')
        for r in R8: a(f'v_max_f32 v{b+r}, s{sEps2}, v{b+r}')
        for r in R8: a(f'v_add_f32 v{b+r}, v{b+r}, v{tmp+r}')
    return o

def epi_q(pc, mode, sbase):
    o = []; t = p.t
    for T_ in range(2):
        o += csb_reads(pc, T_, t + 16 * T_)
    for T_ in range(2):
        for hp in range(2):
            b = acc(pc, T_, 8 * hp); cs = t + 16 * T_ + 8 * hp; tmp = t + 32 + 8 * (hp & 1)
            if mode == 'pk':
                o += [pk('v_pk_fma_f32', b+r, [cs+r, bc(NEGM), b+r]) for r in range(0, 8, 2)]
                o += phi_from_u(b, lambda r: bc(RR), tmp, mode)
            else:
                o += [f'v_fmac_f32 v{b+r}, v{cs+r}, v{NEGM}' for r in range(8)]
                o += phi_from_u(b, lambda r: RR, tmp, mode)
            d = p.pk + 8 * T_ + 4 * hp
            o += pack8(d, b)
            o.append(T(f'buffer_store_dwordx4 {V(d,4)}, v{p.L16}, {SWS}, s{sbase} offen offset:{(2*T_+hp)*1024} sc1', 'st2'))
    return o

def epi_z1(pc, mode, sbase):
    o = []; t = p.t
    for T_ in range(2):
        o += csb_reads(pc, T_, t + 16 * T_)
    for T_ in range(2):
        for hp in range(2):
            o += gelu(pc, T_, hp, t + 16 * T_ + 8 * hp, t + 32 + 8 * (hp & 1), mode)
            d = p.pk + 8 * T_ + 4 * hp
            o += pack8(d, acc(pc, T_, 8 * hp))
            o.append(T(f'buffer_store_dwordx4 {V(d,4)}, v{p.L16}, {SWS}, s{sbase} offen offset:{(2*T_+hp)*1024} sc1', 'st2'))
    return o

def epi_kv_common(pc, mode, is_k, dstpk):
    o = []; t = p.t
    csl = t + 46
    o.append(f'ds_read_b32 v{csl}, v{p.aCSa} offset:{pc*256}')
    o.append(f'ds_read_b32 v{csl+1}, v{p.aCSa} offset:{pc*256+128}')
    for hp in range(2):
        for i2 in range(2):
            o.append(f'ds_read_b128 {V(t+16*hp+4*i2,4)}, v{p.aXS} offset:{(2*hp+i2)*32}')
            o.append(f'ds_read_b128 {V(t+16*hp+8+4*i2,4)}, v{p.aXS} offset:{128+(2*hp+i2)*32}')
    for hp in range(2):
        nm = t + 16 * hp; rr = nm + 8
        for T_ in range(2):
            b = acc(pc, T_, 8 * hp); tmp = t + 32
            if mode == 'pk':
                o += [pk('v_pk_fma_f32', b+r, [nm+r, bc(csl+T_), b+r]) for r in range(0, 8, 2)]
                if is_k: o += phi_from_u(b, lambda r: rr + r, tmp, mode)
                else: o += [pk('v_pk_mul_f32', b+r, [b+r, rr+r]) for r in range(0, 8, 2)]
            else:
                o += [f'v_fmac_f32 v{b+r}, v{nm+r}, v{csl+T_}' for r in range(8)]
                if is_k: o += phi_from_u(b, lambda r: rr + r, tmp, mode)
                else: o += [f'v_mul_f32 v{b+r}, v{b+r}, v{rr+r}' for r in range(8)]
            o += pack8(dstpk + 8 * T_ + 4 * hp, b)
    return o

def z2_gelu_block(prog):
    o = []; t = p.t
    gen = prog == 'B'
    o += csb_reads(0, 0, t) + csb_reads(0, 1, t + 16)
    stb = p.csf
    stb = p.pk
    for T_ in range(2):
        for hp in range(2):
            ht = 2 * T_ + hp
            if gen: st = (stb + 4 * ht, stb + 4 * ht + 2, True)
            else: st = (stb, stb + 2, ht == 0)
            o += gelu(0, T_, hp, t + 16 * T_ + 8 * hp, t + 32 + 8 * (hp & 1), 'pk', st)
    s1, s2 = t + 32, t + 33
    if gen:
        for ht in range(4):
            o.append(f'v_add_f32 v{stb+4*ht}, v{stb+4*ht}, v{stb+4*ht+1}')
            o.append(f'v_add_f32 v{stb+4*ht+2}, v{stb+4*ht+2}, v{stb+4*ht+3}')
        for ht in range(4):
            o.append(f'v_and_b32 v{stb+4*ht}, s{sMk[ht]}, v{stb+4*ht}')
            o.append(f'v_and_b32 v{stb+4*ht+2}, s{sMk[ht]}, v{stb+4*ht+2}')
        o += [f'v_add_f32 v{s1}, v{stb}, v{stb+4}', f'v_add_f32 v{s2}, v{stb+2}, v{stb+6}',
              f'v_add_f32 v{stb+8}, v{stb+8}, v{stb+12}', f'v_add_f32 v{stb+10}, v{stb+10}, v{stb+14}',
              f'v_add_f32 v{s1}, v{s1}, v{stb+8}', f'v_add_f32 v{s2}, v{s2}, v{stb+10}']
    else:
        o += [f'v_add_f32 v{s1}, v{stb}, v{stb+1}', f'v_add_f32 v{s2}, v{stb+2}, v{stb+3}']
    o += [f'v_permlane32_swap_b32 v{s1}, v{s2}', f'v_add_f32 v{s1}, v{s1}, v{s2}', f'v_mov_b32 v{s2}, s{sTag}',
          T(f'buffer_store_dwordx2 {V(s1,2)}, v{p.L16}, {SWS}, s{sB_} offen sc1', 'stS')]
    if gen:
        for ht in range(3):
            d = p.pk + 4 * ht
            o += pack8(d, acc(0, ht >> 1, 8 * (ht & 1)))
            o.append(T(f'buffer_store_dwordx4 {V(d,4)}, v{p.L16}, {SWS}, s{sD} offen offset:{ht*1024} sc1', 'st2'))
    return o

def stats_poll_loads():
    t = p.t
    return [f'buffer_load_dwordx4 {V(t+4*i,4)}, v{p.aST}, {SWS}, 0 offen offset:{(i & 3)*1024} sc1' if i < 4 else
            f'buffer_load_dwordx4 {V(t+4*i,4)}, v{p.aST}, {SWS}, s{sC} offen offset:{(i & 3)*1024} sc1' for i in range(6)]
def stats_check(prog):
    t = p.t; x = t + 24
    c = [f'v_xor_b32 v{x+k}, s{sTag}, v{t+2*k+1}' for k in range(12)]
    c += [f'v_or3_b32 v{x}, v{x}, v{x+1}, v{x+2}', f'v_or3_b32 v{x+3}, v{x+3}, v{x+4}, v{x+5}', f'v_or3_b32 v{x+6}, v{x+6}, v{x+7}, v{x+8}',
          f'v_or3_b32 v{x+9}, v{x+9}, v{x+10}, v{x+11}', f'v_or3_b32 v{x}, v{x}, v{x+3}, v{x+6}', f'v_or_b32 v{x}, v{x}, v{x+9}',
          f'v_cmp_ne_u32 vcc, 0, v{x}']
    return poll_check('ST' + prog, stats_poll_loads(), c)
def z2_normalize(prog):
    o = []; a = o.append; t = p.t
    for k in range(0, 12, 2): a(f'v_add_f32 v{t+2*k}, v{t+2*k}, v{t+2*k+2}')
    a(f'v_add_f32 v{t}, v{t}, v{t+4}'); a(f'v_add_f32 v{t+8}, v{t+8}, v{t+12}'); a(f'v_add_f32 v{t+16}, v{t+16}, v{t+20}')
    a(f'v_add_f32 v{t}, v{t}, v{t+8}'); a(f'v_add_f32 v{t}, v{t}, v{t+16}')
    a(f'v_mov_b32 v{t+1}, v{t}')
    a(f'v_permlane32_swap_b32 v{t}, v{t+1}')
    a(f'v_mul_f32 v{t}, {fx(-1/688)}, v{t}')
    a(f'v_mul_f32 v{t+1}, {fx(1/688)}, v{t+1}')
    a(f'v_fma_f32 v{t+1}, -v{t}, v{t}, v{t+1}')
    a(f'v_max_f32 v{t+1}, 0, v{t+1}')
    a(f'v_add_f32 v{t+1}, {fx(1e-5)}, v{t+1}')
    a(f'v_rsq_f32 v{t+1}, v{t+1}')
    a(f'v_mul_f32 v{t}, v{t}, v{t+1}')
    for T_ in range(2):
        b = acc(0, T_); d = t + 8 + 8 * T_; f = t + 24 + 8 * T_
        for r in range(16): a(f'v_fma_f32 v{b+r}, v{b+r}, v{t+1}, v{t}')
        for i in range(8): a(f'v_cvt_pk_bf16_f32 v{d+i}, v{b+2*i}, v{b+2*i+1}')
        for i in range(4): a(f'ds_write_b64 v{p.aTZw}, {V(d+2*i,2)} offset:{i*16}')
        for ks in range(2):
            for rd in range(2):
                a(f'ds_read_b64_tr_b16 {V(f+4*ks+2*rd,2)}, v{p.aTZr} offset:{(16*ks+4*rd)*72}')
        for ks in range(2):
            o.append(T(f'buffer_store_dwordx4 {V(f+4*ks,4)}, v{p.L16}, {SWS}, s{sMk[T_] if False else (sZ2o[T_])} offen offset:{ks*1024} sc1', 'stZ'))
    return o
sZ2o = [100, 101]

def phase1(prog):
    global slow_blocks
    sg = Seg()
    atype = {'A': [0, 1, 1], 'B': [0, 0, 0], 'C': [0, 0, 0]}[prog]
    hasz2 = prog != 'C'
    t = p.t
    o = []; a = o.append
    if prog == 'A':
        a(f's_lshl_b32 s{sT0}, s{sG}, 7')
        a(f's_add_u32 s{sWb[0]}, s{sT0}, {11*128}'); a(f's_add_u32 s{sWb[1]}, s{sT0}, 1024'); a(f's_add_u32 s{sWb[2]}, s{sT0}, 2048')
    elif prog == 'B':
        a(f's_and_b32 s{sT1}, s{sG}, 3')
        a(f's_lshl_b32 s{sT0}, s{sT1}, 3'); a(f's_lshr_b32 s{sT0}, {0x150A1413}, s{sT0}'); a(f's_and_b32 s{sT0}, s{sT0}, 0xff')
        a(f's_lshl_b32 s{sWb[0]}, s{sT0}, 7')
        a(f's_lshl_b32 s{sWb[1]}, s{sT1}, 8'); a(f's_add_u32 s{sWb[2]}, s{sWb[1]}, 128')
    else:
        a(f's_and_b32 s{sT1}, s{sG}, 3')
        a(f's_lshl_b32 s{sT0}, s{sT1}, 3'); a(f's_lshr_b32 s{sT0}, {0x08060300}, s{sT0}'); a(f's_and_b32 s{sT0}, s{sT0}, 0xff')
        a(f's_lshl_b32 s{sWb[0]}, s{sT0}, 7'); a(f's_add_u32 s{sWb[1]}, s{sWb[0]}, 128'); a(f's_add_u32 s{sWb[2]}, s{sWb[0]}, 256')
    a(f'buffer_load_dword v{p.E}, off, {SWS}, 0 sc1')
    for kind, idx, slot in (('X',0,0), ('X',1,1), ('W',0,2), ('X',2,3), ('X',3,4), ('W',1,5), ('X',4,6), ('X',5,7)):
        o += dma_item(kind, idx, slot, prog)
        if slot == 2: o += code_prefetch(prog)
    o += stamp(1)
    sg.extend(o)
    o = []; a = o.append
    l3, swzX, swzW, roww = PRO_TMP
    L = p.L
    o += srd(SSP, 58, 2048*4096) + srd(SWO, 52, 512*1024) + srd(SWOUT, 62, 688*1024) + srd(SOUT, 64, 2048*1024) + srd(SB, 60, 4096) + srd(SDBG, 66, 256)
    a(f'v_lshlrev_b32 v{p.L16}, 4, v{L}')
    if prog != 'C':
        a(f's_movk_i32 s{sT0}, 3072')
        a(f'v_mad_u32_u24 v{p.offWb}, v{roww}, s{sT0}, v{swzW}')
        for i in range(1, 4): a(f'v_add_u32 v{p.offWb+i}, {i*(8*3072-1024)}, v{p.offWb}')
    a(f's_lshr_b32 s{sT0}, s{sW}, 1'); a(f's_lshl_b32 s{sT1}, s{sTB}, 1'); a(f's_add_u32 s{sT1}, s{sT1}, s{sT0}')
    a(f's_lshl_b32 s{sSo0}, s{sT1}, 17'); a(f's_lshl_b32 s{sT0}, s{sW}, 10'); a(f's_add_u32 s{sSo0}, s{sSo0}, s{sT0}')
    a(f's_xor_b32 s{sSo1}, s{sSo0}, 0x20000')
    row, h, f = t + 8, t + 9, t + 10
    a(f'v_and_b32 v{row}, 31, v{L}'); a(f'v_lshrrev_b32 v{h}, 5, v{L}')
    a(f'v_bfe_u32 v{f}, v{L}, 1, 3'); a(f'v_xor_b32 v{f}, v{f}, v{h}'); a(f'v_lshlrev_b32 v{f}, 4, v{f}')
    a(f'v_lshl_add_u32 v{f}, v{row}, 7, v{f}'); a(f'v_add_u32 v{p.xrd[0]}, s{sW4K}, v{f}')
    for j in range(1, 4): a(f'v_xor_b32 v{p.xrd[0]+j}, {32*j}, v{p.xrd[0]}')
    for j in range(4): a(f'v_add_u32 v{p.xrd[1]+j}, 0x10000, v{p.xrd[0]+j}')
    r_, c_, g_ = t + 11, t + 12, t + 13
    a(f'v_bfe_u32 v{r_}, v{L}, 2, 2'); a(f'v_and_b32 v{c_}, 3, v{L}'); a(f'v_bfe_u32 v{g_}, v{L}, 4, 1')
    a(f'v_lshlrev_b32 v{c_}, 3, v{c_}'); a(f'v_lshl_add_u32 v{c_}, v{g_}, 5, v{c_}')
    a(f'v_lshl_add_u32 v{t+14}, v{h}, 3, v{r_}')
    a(f'v_lshl_add_u32 v{t+15}, v{t+14}, 7, v{c_}')
    a(f'v_bfe_u32 v{t+16}, v{L}, 3, 1'); a(f'v_lshl_add_u32 v{p.tr[0]}, v{t+16}, 6, v{t+15}')
    a(f'v_xor_b32 v{p.tr[0]+1}, 64, v{p.tr[0]}')
    for k in range(2):
        a(f'v_add_u32 v{p.tr[1]+k}, 0x10000, v{p.tr[0]+k}')
        a(f'v_add_u32 v{p.cs[0]+k}, s{sW4K}, v{p.tr[0]+k}')
        a(f'v_add_u32 v{p.cs[1]+k}, 0x10000, v{p.cs[0]+k}')
    a(f'v_lshlrev_b32 v{p.aCSb}, 4, v{h}'); a(f'v_add_u32 v{p.aCSb}, {L_CS}, v{p.aCSb}')
    a(f'v_lshlrev_b32 v{p.aCSa}, 2, v{row}'); a(f'v_add_u32 v{p.aCSa}, {L_CS}, v{p.aCSa}')
    a(f's_lshl_b32 s{sA}, s{sW}, 8'); a(f's_add_u32 s{sA}, s{sA}, {L_XS}')
    a(f'v_lshlrev_b32 v{p.aXS}, 4, v{h}'); a(f'v_add_u32 v{p.aXS}, s{sA}, v{p.aXS}')
    a(f's_mul_i32 s{sT0}, s{sW}, 2304'); a(f's_add_u32 s{sT0}, s{sT0}, {L_TZ}')
    a(f'v_mul_u32_u24 v{p.aTZw}, 72, v{row}'); a(f'v_lshl_add_u32 v{p.aTZw}, v{h}, 3, v{p.aTZw}'); a(f'v_add_u32 v{p.aTZw}, s{sT0}, v{p.aTZw}')
    a(f'v_mul_u32_u24 v{p.aTZr}, 72, v{t+14}'); a(f'v_add3_u32 v{p.aTZr}, v{p.aTZr}, v{c_}, s{sT0}')
    a(f'v_mov_b32 v{p.ones}, 0x3f803f80')
    for k in range(4): a(f'v_mov_b32 v{p.st+k}, 0')
    a(f'v_and_b32 v{t+17}, 15, v{L}'); a(f'v_lshlrev_b32 v{t+18}, 2, v{g_}'); a(f'v_sub_u32 v{t+17}, v{t+17}, v{t+18}')
    a(f'v_cmp_eq_u32 vcc, 0, v{t+17}'); a(f'v_cndmask_b32 v{p.sel}, 0, v{p.ones}, vcc')
    a(f'v_cmp_eq_u32 vcc, 8, v{t+17}'); a(f'v_cndmask_b32 v{p.sel+4}, 0, v{p.ones}, vcc')
    for k in range(1, 4):
        a(f'v_mov_b32 v{p.sel+k}, v{p.sel}'); a(f'v_mov_b32 v{p.sel+4+k}, v{p.sel+4}')
    a(f'v_lshlrev_b32 v{p.k45+1}, 2, v{L}'); a(f'v_add_u32 v{p.k45+1}, {L_CS}, v{p.k45+1}')
    for k in range(3): o.append(T(f'ds_write_b32 v{p.k45+1}, v{p.st} offset:{256*k}', 'zcs'))
    a(f's_mov_b32 s{sEps2}, {fx(1e-6)}'); a(f's_mov_b32 s{sEps2+1}, {fx(1e-6)}')
    a(f's_mov_b32 s{sL2e2}, {fx(LOG2E)}'); a(f's_mov_b32 s{sL2e2+1}, {fx(LOG2E)}')
    a(f's_mov_b32 s{sMaskLo}, 0xffff'); a(f's_mov_b32 s{sMaskLo+1}, 0xffff')
    a(f's_or_b32 s{sFirst}, s2, s{sW}')
    if hasz2:
        a(f's_lshr_b32 s{sT0}, s{sWb[0]}, 7')
        a(f's_sub_u32 s{sT1}, s{sT0}, 10')
        a(f's_mul_i32 s{sB_}, s{sST}, 6144'); a(f's_add_u32 s{sB_}, s{sB_}, {WS_STATS}')
        a(f'v_add_u32 v{p.aST}, s{sB_}, v{p.L16}')
        a(f's_movk_i32 s{sC}, 4096')
        a(f's_lshr_b32 s{sT2}, s{sT1}, 1'); a(f's_lshl_b32 s{sT2}, s{sT2}, 10'); a(f's_add_u32 s{sB_}, s{sB_}, s{sT2}')
        a(f's_and_b32 s{sT2}, s{sT1}, 1'); a(f's_lshl_b32 s{sT2}, s{sT2}, 3'); a(f's_add_u32 s{sB_}, s{sB_}, s{sT2}')
        a(f's_lshl_b32 s{sT2}, s{sT0}, 18'); a(f's_lshl_b32 s{sZ2o[0]}, s{sST}, 11'); a(f's_add_u32 s{sZ2o[0]}, s{sZ2o[0]}, s{sT2}')
        a(f's_add_u32 s{sZ2o[0]}, s{sZ2o[0]}, {(WS_Z2T - 21*131072) & 0xffffffff}')
        a(f's_add_u32 s{sZ2o[1]}, s{sZ2o[0]}, 131072')
        if prog == 'B':
            a(f's_cmp_eq_u32 s{sT0}, 10')
            a(f's_cselect_b32 s{sZ2o[0]}, {OOB}, s{sZ2o[0]}')
            for k in range(3): a(f's_cselect_b32 s{sMk[k]}, 0, -1')
            a(f's_mov_b32 s{sMk[3]}, -1')
            a(f's_mul_i32 s{sD}, s{sST}, {43*1024}'); a(f's_add_u32 s{sD}, s{sD}, {WS_Z1 + 40*1024}')
            a(f's_cmp_eq_u32 s{sT0}, 10')
            a(f's_cselect_b32 s{sD}, s{sD}, {OOB}')
            a(f's_cmp_eq_u32 s{sT0}, 21')
            a(f's_cselect_b32 s{sZ2o[1]}, {OOB}, s{sZ2o[1]}')
            a(f's_cselect_b32 s{sMk[2]}, 0, s{sMk[2]}'); a(f's_cselect_b32 s{sMk[3]}, 0, s{sMk[3]}')
    sg.extend(o)
    o = consume_X_reads(0, 0, t)
    o += stamp(2)
    o += [f's_cmp_eq_u32 s{sFirst}, 0', f's_cbranch_scc1 EPOCH_{prog}', f'EPOCHR_{prog}:']
    eb = Seg(); eb.extend([f'EPOCH_{prog}:', f'v_add_u32 v{p.E}, 1, v{p.E}', f'v_max_u32 v{p.E}, 1, v{p.E}', 's_mov_b64 exec, 1',
        f'buffer_store_dword v{p.E}, off, {SWS}, 0 sc1', f'buffer_store_dword v{p.E}, off, {SDBG}, 0 sc1', 's_mov_b64 exec, -1', 's_nop 1', f's_branch EPOCHR_{prog}'])
    slow_blocks.append(eb.text())
    o += consume_X_reads(1, 1, t + 16)
    o += ['WAIT xr0'] + dma_item('W', 2, 0, prog) + consume_X_stats(t)
    o += ['WAIT xr1'] + dma_item('X', 6, 1, prog) + consume_X_stats(t + 16)
    o += ['WAIT W0 zcs', 's_barrier']
    o += w_reads(0, 0) + w_reads(0, 1) + cs_reads(0, 0) + w_reads(1, 0) + w_reads(1, 1) + cs_reads(0, 1)
    sg.extend(o)

    pre = {n: [] for n in range(97)}
    gap = {n: [[], []] for n in range(96)}
    def xpair(n_rd, n_st, q, s0, s1, nxt0, nxt1):
        gap[n_rd][0] += consume_X_reads(q, s0, t); gap[n_rd + 1][0] += consume_X_reads(q + 1, s1, t + 16)
        pre[n_st] += [f'WAIT xr{q}'] + dma_item(*nxt0, s0, prog) + consume_X_stats(t) + [f'WAIT xr{q+1}'] + dma_item(*nxt1, s1, prog) + consume_X_stats(t + 16)
    xpair(3, 6, 2, 3, 4, ('X', 7), ('W', 3))
    xpair(11, 14, 4, 6, 7, ('W', 4), ('S', 0))
    xpair(19, 22, 6, 1, 3, ('S', 1), ('S', 2))
    after_bar = {2: ('W', 5, 2), 3: ('W', 6, 5), 4: ('W', 7, 0), 5: ('W', 8, 4), 6: ('W', 9, 6), 7: ('W', 10, 2), 8: ('W', 11, 5),
                 9: ('S', 11, 0), 10: ('S', 12, 4), 11: ('S', 13, 6), 12: ('S', 14, 2)}
    for c in range(1, 13):
        n = 8 * c - 2
        pre[n] += [f'WAIT W{c} csadd', 's_barrier']
        if c in after_bar: gap[n][0] += dma_item(*after_bar[c], prog)
    for c in range(12):
        for f in range(4):
            n = 8 * c - 2 + f
            if n >= 0 and not (c == 0 and f < 2): gap[n][1] += cs_reads(c, f)
            pre[8 * c + f].append(cs_mfma(c, f))
        if c & 3 == 3:
            gap[8 * c + 5][0] += [T(f'ds_add_f32 v{p.k45+1}, v{p.csacc} offset:{256*(c >> 2)}', 'csadd')]
    def sgroup(n, items):
        for k, (i, slot, nxt) in enumerate(items):
            gap[n + k][0] += consume_S(i, slot)
            if nxt is not None: gap[n + k + 2][1] += [f'WAIT sr{i}'] + dma_item('S', nxt, slot, prog)
    sgroup(32, [(0, 7, 3), (1, 1, 4), (2, 3, 5)])
    sgroup(48, [(3, 7, 6), (4, 1, 7), (5, 3, 8)])
    sgroup(64, [(6, 7, 9), (7, 1, 10)])
    gap[8][0] += [f'v_lshrrev_b32 v{t+40}, 3, v{p.L}', f'v_mul_u32_u24 v{t+40}, 3072, v{t+40}', f'v_add_u32 v{p.offS}, v{t+40}, v{p.offX}']
    for i in range(1, 4): gap[8 + i][0] += [f'v_add_u32 v{t+40}, 24576, v{t+40}', f'v_add_u32 v{p.offS+i}, v{t+40}, v{p.offX+i}']
    gap[16][1].append(f'buffer_load_dword v{p.E}, off, {SDBG}, 0 sc1')

    def steps(n0, n1):
        o = []
        for n in range(n0, n1):
            o += pre[n]
            for T_ in range(2):
                o.append(main_mfma(n, T_, atype[n >> 5]))
                if n + 2 < 96: o += w_reads(n + 2, T_)
                o += gap[n][T_]
        return o
    def run(n0, n1, fill=(), budget=6.0):
        m, rest = merge(steps(n0, n1), list(fill), budget)
        sg.extend(m); sg.extend(rest)

    run(0, 24)
    run(24, 32, xstat_finalize() + (xstat_to_lds() if prog == 'A' else []))
    sg.extend(stamp(3))
    tg = Seg(); tg.extend([f'SLOW_TG{prog}:', f's_mov_b32 s{sCnt}, {SPIN}', f'SLOWL_TG{prog}:', f'buffer_load_dword v{p.E}, off, {SDBG}, 0 sc1', 's_waitcnt vmcnt(0)',
        f'v_readfirstlane_b32 s{sTag}, v{p.E}', f's_cmp_lg_u32 s{sTag}, 0', f's_cbranch_scc1 RET_TG{prog}', f's_sub_u32 s{sCnt}, s{sCnt}, 1', f's_cmp_lg_u32 s{sCnt}, 0',
        f's_cbranch_scc1 SLOWL_TG{prog}', f's_branch RET_TG{prog}'])
    slow_blocks.append(tg.text())
    sg.extend([f'v_readfirstlane_b32 s{sTag}, v{p.E}', f's_cmp_eq_u32 s{sTag}, 0', f's_cbranch_scc1 SLOW_TG{prog}', f'RET_TG{prog}:'])
    f1post = []
    if hasz2:
        sg.extend(z2_gelu_block(prog))
        sg.extend(stamp(4))
        run(32, 50)
        sg.extend(stats_poll_loads())
        run(50, 58)
        sg.extend(stats_check(prog))
        sg.extend(stamp(5))
        run(58, 64, z2_normalize(prog), 7.0)
        f1post = ['WAIT stZ'] + post_flag(p.E, [f's_lshr_b32 s{sT1}, s{sWb[0]}, 7', f's_lshl_b32 s{sT1}, s{sT1}, 10', f's_lshl_b32 s{sT2}, s{sST}, 4',
                  f's_add_u32 s{sT1}, s{sT1}, s{sT2}', f's_add_u32 s{sT1}, s{sT1}, {WS_F1 - 10*1024}'], sT1)
    if prog == 'A':
        fl = epi_kv_common(1, 'scalar', True, p.pk)
        run(64, 76, fl[:len(fl)//3], 7.0); sg.extend(f1post); sg.extend(stamp(6)); run(76, 96, fl[len(fl)//3:], 7.0)
    elif prog == 'B':
        sg.extend([f's_lshl_b32 s{sD}, s{sST}, 15', f's_lshl_b32 s{sT1}, s{sWb[1]}, 5', f's_add_u32 s{sD}, s{sD}, s{sT1}', f's_add_u32 s{sD}, s{sD}, {WS_PQ}'])
        fl = epi_q(1, 'scalar', sD)
        run(64, 76, fl[:len(fl)//3], 7.0); sg.extend(f1post); sg.extend(stamp(6)); run(76, 96, fl[len(fl)//3:], 7.0)
    else:
        sg.extend([f's_mul_i32 s{sD}, s{sST}, {43*1024}', f's_lshl_b32 s{sT1}, s{sWb[0]}, 5', f's_add_u32 s{sD}, s{sD}, s{sT1}', f's_add_u32 s{sD}, s{sD}, {WS_Z1}'])
        run(32, 64, epi_z1(0, 'scalar', sD), 8.0)
        sg.extend([f's_add_u32 s{sD}, s{sD}, 4096'])
        run(64, 96, epi_z1(1, 'scalar', sD), 8.0)
    sg.extend(stamp(7))
    o = consume_S(8, 3) + consume_S(9, 7) + consume_S(10, 1) + ['WAIT sr8'] + dma_item('S', 15, 3, prog)
    o += consume_S(11, 0) + consume_S(12, 4) + consume_S(13, 6)
    sg.extend(o)
    if prog == 'A':
        vp = acc(0, 0)
        sg.extend(epi_kv_common(2, 'pk', False, vp))
        va = acc(0, 1)
        o = []
        D = [[acc(1, 0), acc(1, 1)], [acc(2, 0), acc(2, 1)]]
        for T_ in range(2):
            m = va if T_ == 0 else p.t
            for r in range(8):
                o.append(f'v_cndmask_b32 v{m+r}, v{p.ones}, v{vp+8*T_+r}, {S(sMaskLo,2)}')
                o.append(f'v_cndmask_b32 v{m+8+r}, v{vp+8*T_+r}, v{p.ones}, {S(sMaskLo,2)}')
            for q in range(2):
                for var in range(2):
                    d = V(D[T_][var], 16)
                    o.append(f'v_mfma_f32_32x32x16_bf16 {d}, {V(p.pk+8*T_+4*q,4)}, {V(m+8*var+4*q,4)}, {"0" if q == 0 else d}')
        o += consume_S(14, 2)
        ad = p.t + 20
        o += [f'v_add_u32 v{ad}, s{sW4K}, v{p.L16}', f'v_add_u32 v{ad+1}, {7*SLOT}, v{ad}', 'WAIT sr9 sr10']
        for u in range(4):
            T_, hf = u >> 1, u & 1
            src = D[T_][hf] + 8 * hf
            for k in range(2):
                if T_ == 0: o.append(T(f'ds_write_b128 v{ad+1}, {V(src+4*k,4)} offset:{hf*2048+k*1024}', 'kvw'))
                else: o.append(T(f'ds_write_b128 v{ad}, {V(src+4*k,4)} offset:{SLOT+hf*2048+k*1024}', 'kvw'))
        o += [f's_lshr_b32 s{sT0}, s{sW}, 1', f's_cmp_eq_u32 s{sT0}, 0', f's_movk_i32 s{sT1}, {SLOT}', f's_cselect_b32 s{sT0}, {7*SLOT}, s{sT1}',
              f's_and_b32 s{sT1}, s{sW}, 1', f's_lshl_b32 s{sT1}, s{sT1}, 11', f's_add_u32 s{sT0}, s{sT0}, s{sT1}',
              f'v_add_u32 v{ad+2}, s{sT0}, v{p.L16}', 'WAIT kvw', 's_barrier']
        rb = acc(0, 0)
        for w2 in range(4):
            for k in range(2): o.append(f'ds_read_b128 {V(rb+8*w2+4*k,4)}, v{ad+2} offset:{w2*4096+k*1024}')
        for r in range(0, 8, 2): o.append(pk('v_pk_add_f32', rb+r, [rb+r, rb+8+r]))
        for r in range(0, 8, 2): o.append(pk('v_pk_add_f32', rb+16+r, [rb+16+r, rb+24+r]))
        for r in range(0, 8, 2): o.append(pk('v_pk_add_f32', rb+r, [rb+r, rb+16+r]))
        o += [f's_lshl_b32 s{sT0}, s{sRB}, 16', f's_lshl_b32 s{sT1}, s{sG}, 13', f's_add_u32 s{sT0}, s{sT0}, s{sT1}', f's_lshl_b32 s{sT1}, s{sW}, 11',
              f's_add_u32 s{sT0}, s{sT0}, s{sT1}', f's_add_u32 s{sT0}, s{sT0}, {WS_KVP}']
        for k in range(2): o.append(T(f'buffer_store_dwordx4 {V(rb+4*k,4)}, v{p.L16}, {SWS}, s{sT0} offen offset:{k*1024} sc1', 'st2'))
        sg.extend(o)
    elif prog == 'B':
        sg.extend([f's_add_u32 s{sD}, s{sD}, 4096'] + epi_q(2, 'pk', sD) + consume_S(14, 2) + ['s_barrier'])
    else:
        sg.extend([f's_add_u32 s{sD}, s{sD}, 4096', f's_cmp_ge_u32 s{sG}, 14', f's_cselect_b32 s{sD}, {OOB}, s{sD}'] + epi_z1(2, 'pk', sD) + consume_S(14, 2) + ['s_barrier'])
    sg.extend(consume_S(15, 3))
    sg.extend(['s_waitcnt vmcnt(0) lgkmcnt(0)'])
    sg.extend(post_flag(p.E, [f's_lshl_b32 s{sT1}, s{sST}, 8', f's_lshl_b32 s{sT2}, s{sG}, 4', f's_add_u32 s{sT1}, s{sT1}, s{sT2}', f's_add_u32 s{sT1}, s{sT1}, {WS_F2}'], sT1))
    sg.extend(stamp(8))
    return sg

def code_prefetch(prog):
    t = p.t + 20
    return [f's_getpc_b64 s[24:25]', f'PC_{prog}:', f's_sub_u32 s24, s24, PC_{prog}-KSTART', f's_subb_u32 s25, s25, 0', f's_mov_b32 s26, CODE_END-KSTART', f's_mov_b32 s27, 0x20000',
            f's_lshr_b32 s{sT0}, s2, 3', f's_lshl_b32 s{sT0}, s{sT0}, 2', f's_add_u32 s{sT0}, s{sT0}, s{sW}', f's_lshl_b32 s{sT0}, s{sT0}, 10',
            f'v_lshlrev_b32 v{t}, 4, v{p.L}', f'buffer_load_dwordx4 {V(acc(2,1),4)}, v{t}, s[24:27], s{sT0} offen']

class P2: pass
q = P2()
_n[0] = 4
q.L, q.L16, q.E = p.L, p.L16, p.E
q.zoff = alloc(1); q.b = alloc(1); q.aRW = alloc(3); q.aRR = alloc(1); q.poll = alloc(1); q.pa = alloc(1)
q.offD = alloc(4)
q.z1 = alloc(12, 4); q.red = alloc(24, 4); q.t = alloc(12, 4)
q.acc = alloc(64, 4)
q.stg = alloc(128, 4)
assert _n[0] <= 256, _n[0]
NS = 32
sZb, sHo, sZ1o = sA, sB_, sC

def flag_cmp(): return [f'v_cmp_ne_u32 vcc, s{sTag}, v{q.poll}']
def poll_load(): return [f'buffer_load_dword v{q.poll}, v{q.pa}, {SWS}, 0 offen sc1']

def dma_d(kind, g4):
    if kind == 'wo':   lds = f's_lshl_b32 s{sT1}, s{sW}, 14'; base = g4 * 4096; rs = SWO; rowb = f's_lshl_b32 s{sT0}, s{sW}, 17'; add = g4 * 32768
    elif kind == 'wt': lds = f's_mul_i32 s{sT1}, s{sW}, {144*128}'; base = L_WOUT + g4 * 4096; rs = SWOUT; rowb = f's_mul_i32 s{sT0}, s{sW}, {144*1024}'; add = g4 * 32768
    else:              lds = f's_lshl_b32 s{sT1}, s{sW}, 12'; base = L_RED; rs = SWOUT; rowb = f's_lshl_b32 s{sT0}, s{sW}, 15'; add = 576 * 1024
    n = 2 if (kind == 'wt' and g4 == 4) else 4
    o = [lds, f's_add_u32 m0, s{sT1}, {base}', rowb, f's_add_u32 s{sT0}, s{sT0}, s{sD}', f's_add_u32 s{sT0}, s{sT0}, {add}']
    for i in range(n): o.append(T(f'buffer_load_dwordx4 v{q.offD+i}, {rs}, s{sT0} offen offset:{i*1024} lds', kind))
    return o

def zload(n):
    ft, ks = n >> 5, n & 31
    o = []
    if ks & 3 == 0: o.append(f's_add_u32 s{sT2}, s{sZb}, {ft*131072 + ks*1024}')
    o.append(f'buffer_load_dwordx4 {V(q.stg+4*(n % NS),4)}, v{q.zoff}, {SWS}, s{sT2} offen offset:{(ks & 3)*1024} sc1')
    return o
def zmfma(n, b):
    ft, ks = n >> 5, n & 31
    d = V(q.acc + 32 * (ft & 1) + 16 * b, 16)
    return f'v_mfma_f32_32x32x16_bf16 {d}, {V(q.stg+4*(n % NS),4)}, {A(128*b+4*ks,4)}, {"0" if ks == 0 else d}'
def red_write(ft):
    ac = q.acc + 32 * (ft & 1); o = []
    for m in range(1, 4):
        for k in range(2): o.append(T(f'ds_write_b128 v{q.aRW+m-1}, {V(ac+8*m+4*k,4)} offset:{k*1024}', 'rw'))
    return o
def red_read():
    return [T(f'ds_read_b128 {V(q.red+4*i,4)}, v{q.aRR} offset:{i*1024}', 'rr') for i in range(6)]
def h_epi(ft, mode):
    ac = q.acc + 32 * (ft & 1); o = []; a = o.append; r = q.red; z = q.z1 + 4 * ft; t = q.t
    if mode == 'pk':
        for i in range(0, 8, 2): a(pk('v_pk_add_f32', ac+i, [ac+i, bc(q.b)]))
        for i in range(0, 8, 2): a(pk('v_pk_add_f32', r+i, [r+i, r+8+i]))
        for i in range(0, 8, 2): a(pk('v_pk_add_f32', ac+i, [ac+i, r+16+i]))
        for i in range(4): a(f'v_lshlrev_b32 v{t+2*i}, 16, v{z+i}'); a(f'v_and_b32 v{t+2*i+1}, 0xffff0000, v{z+i}')
        for i in range(0, 8, 2): a(pk('v_pk_add_f32', ac+i, [ac+i, r+i]))
        for i in range(0, 8, 2): a(pk('v_pk_mul_f32', ac+i, [ac+i, t+i]))
    else:
        for i in range(8): a(f'v_add_f32 v{ac+i}, v{ac+i}, v{q.b}')
        for i in range(8): a(f'v_add_f32 v{r+i}, v{r+i}, v{r+8+i}')
        for i in range(8): a(f'v_add_f32 v{ac+i}, v{ac+i}, v{r+16+i}')
        for i in range(4): a(f'v_lshlrev_b32 v{t+2*i}, 16, v{z+i}'); a(f'v_and_b32 v{t+2*i+1}, 0xffff0000, v{z+i}')
        for i in range(8): a(f'v_add_f32 v{ac+i}, v{ac+i}, v{r+i}')
        for i in range(8): a(f'v_mul_f32 v{ac+i}, v{ac+i}, v{t+i}')
    o += pack8(t + 8, ac)
    if ft == 2: a(f's_add_u32 s{sHo}, s{sHo}, 4096')
    o.append(T(f'buffer_store_dwordx4 {V(t+8,4)}, v{q.L16}, {SWS}, s{sHo} offen offset:{(ft & 1)*2048} sc1', 'stH'))
    return o
def z1_loads(n):
    o = []
    for ft in range(n):
        if ft == 2: o.append(f's_add_u32 s{sZ1o}, s{sZ1o}, 4096')
        o.append(f'buffer_load_dwordx4 {V(q.z1+4*ft,4)}, v{q.L16}, {SWS}, s{sZ1o} offen offset:{(ft & 1)*2048} sc1')
    return o
def f2_addr():
    t = q.t
    return [f'v_and_b32 v{t}, 31, v{q.L}', f'v_lshlrev_b32 v{t}, 4, v{t}', f's_lshl_b32 s{sT0}, s{sTB}, 9', f's_add_u32 s{sT0}, s{sT0}, {WS_F2}',
            f'v_add_u32 v{q.pa}, s{sT0}, v{t}']

def phase2_setup():
    o = []; a = o.append; t = q.t; L = q.L
    a(f's_mul_i32 s{sT0}, s{sJ}, 3'); a(f's_add_u32 s{sT0}, s{sT0}, 1')
    a(f's_cmp_eq_u32 s{sJ}, 7'); a(f's_cselect_b32 s{sT0}, 0, s{sT0}')
    a(f's_add_u32 s{sT1}, s{sT0}, 1'); a(f's_lshr_b32 s{sT1}, s{sT1}, 1')
    a(f's_lshl_b32 s{sT1}, s{sT1}, 10'); a(f's_lshl_b32 s{sT2}, s{sW}, 8'); a(f's_add_u32 s{sT1}, s{sT1}, s{sT2}'); a(f's_add_u32 s{sT1}, s{sT1}, {WS_F1}')
    a(f'v_and_b32 v{t}, 15, v{L}'); a(f'v_lshlrev_b32 v{t}, 4, v{t}'); a(f'v_bfe_u32 v{t+1}, v{L}, 4, 1'); a(f'v_lshl_add_u32 v{t}, v{t+1}, 10, v{t}')
    a(f'v_add_u32 v{q.pa}, s{sT1}, v{t}')
    o += poll_load()
    a(f's_lshl_b32 s{sZb}, s{sT0}, 17'); a(f's_lshl_b32 s{sT1}, s{sW}, 15'); a(f's_add_u32 s{sZb}, s{sZb}, s{sT1}'); a(f's_add_u32 s{sZb}, s{sZb}, {WS_Z2T}')
    a(f's_and_b32 s{sT1}, s{sW}, 1'); a(f's_lshl_b32 s{sT2}, s{sT1}, 8'); a(f'v_xor_b32 v{q.zoff}, s{sT2}, v{q.L16}')
    a(f's_lshl_b32 s{sT0}, s{sT0}, 1'); a(f's_add_u32 s{sT0}, s{sT0}, s{sT1}')
    a(f's_lshr_b32 s{sT1}, s{sW}, 1'); a(f's_lshl_b32 s{sT2}, s{sTB}, 1'); a(f's_add_u32 s{sT1}, s{sT1}, s{sT2}')
    a(f's_mul_i32 s{sT2}, s{sT1}, 43'); a(f's_add_u32 s{sT2}, s{sT2}, s{sT0}'); a(f's_lshl_b32 s{sT2}, s{sT2}, 10')
    a(f's_add_u32 s{sHo}, s{sT2}, {WS_H - 1024}'); a(f's_add_u32 s{sZ1o}, s{sT2}, {WS_Z1 - 1024}')
    a(f's_cmp_eq_u32 s{sT0}, 0'); a(f's_cselect_b32 s{sHo}, {OOB}, s{sHo}'); a(f's_cselect_b32 s{sZ1o}, {OOB}, s{sZ1o}')
    a(f's_lshl_b32 s{sT1}, s{sT1}, 6'); a(f'v_and_b32 v{t}, 31, v{L}'); a(f'v_lshlrev_b32 v{t}, 1, v{t}')
    a(f'buffer_load_ushort v{q.b}, v{t}, {SB}, s{sT1} offen')
    for m in range(1, 4):
        a(f's_xor_b32 s{sT0}, s{sW}, {m}'); a(f's_mul_i32 s{sT0}, s{sT0}, 6144'); a(f's_add_u32 s{sT0}, s{sT0}, {L_RED + (m-1)*2048}')
        a(f'v_add_u32 v{q.aRW+m-1}, s{sT0}, v{q.L16}')
    a(f's_mul_i32 s{sT0}, s{sW}, 6144'); a(f's_add_u32 s{sT0}, s{sT0}, {L_RED}'); a(f'v_add_u32 v{q.aRR}, s{sT0}, v{q.L16}')
    a(f'v_lshrrev_b32 v{t}, 3, v{L}'); a(f'v_bfe_u32 v{t+1}, v{L}, 4, 1'); a(f'v_lshlrev_b32 v{t+1}, 2, v{t+1}'); a(f'v_and_b32 v{t+2}, 7, v{L}')
    a(f'v_xor_b32 v{t+1}, v{t+1}, v{t+2}'); a(f'v_lshlrev_b32 v{t+1}, 4, v{t+1}'); a(f'v_lshl_add_u32 v{q.offD}, v{t}, 10, v{t+1}')
    for i in range(1, 4): a(f'v_add_u32 v{q.offD+i}, {i*7168}, v{q.offD}')
    a(f's_lshl_b32 s{sD}, s{sJ}, 7')
    o += poll_check('F1', poll_load(), flag_cmp())
    return o

def ddma_all():
    o = []
    for g in range(4): o.append(dma_d('wo', g))
    for g in range(5): o.append(dma_d('wt', g))
    return o

def gemm2_main(sg):
    o = []
    for n in range(NS): o += zload(n)
    o += [f'v_lshlrev_b32 v{q.b}, 16, v{q.b}'] + f2_addr() + poll_load()
    sg.extend(o)
    gap = {n: [] for n in range(96)}
    gap[24] += poll_check('F2', poll_load(), flag_cmp()) + z1_loads(3)
    for ft in range(2):
        n = 32 * (ft + 1)
        if ft: gap[n] += ['s_barrier']
        gap[n + 1] += red_write(ft)
        gap[n + 4] += ['WAIT rw', 's_barrier'] + red_read()
    dd = ddma_all()
    for k, grp in enumerate(dd): gap[66 + 3 * k] += grp
    def steps(n0, n1):
        o = []
        for n in range(n0, n1):
            o += [zmfma(n, 0), zmfma(n, 1)]
            if n + NS < 96: o += zload(n + NS)
            o += gap[n]
        return o
    sg.extend(steps(0, 38))
    m, rest = merge(steps(38, 64), h_epi(0, 'scalar'), 4.0); sg.extend(m); sg.extend(rest)
    sg.extend(steps(64, 70))
    m, rest = merge(steps(70, 96), h_epi(1, 'scalar'), 4.0); sg.extend(m); sg.extend(rest)
    sg.extend(['s_barrier'] + red_write(2) + ['WAIT rw', 's_barrier'] + red_read() + h_epi(2, 'pk'))

def gemm2_light(sg):
    o = []
    for n in range(NS): o += zload(n)
    o += [f'v_lshlrev_b32 v{q.b}, 16, v{q.b}'] + f2_addr() + poll_load()
    for n in range(32): o += [zmfma(n, 0), zmfma(n, 1)]
    o += poll_check('F2L', poll_load(), flag_cmp()) + z1_loads(1)
    o += red_write(0) + ['WAIT rw', 's_barrier'] + red_read()
    for grp in ddma_all(): o += grp
    o += h_epi(0, 'pk')
    sg.extend(o)
    t = q.t; g = q.stg
    o = [f's_cmp_lg_u32 s{sW}, 0', 's_cbranch_scc1 KVR_END']
    sg.extend(o)
    k = Seg(vmq=[], hist=sg.hist)
    o = [f'v_and_b32 v{t}, 15, v{q.L}', f'v_lshlrev_b32 v{t}, 10, v{t}', f's_and_b32 s{sT0}, s{sTB}, 3', f's_lshl_b32 s{sT0}, s{sT0}, 8',
         f's_lshr_b32 s{sT1}, s{sTB}, 2', f's_lshl_b32 s{sT1}, s{sT1}, 4', f's_add_u32 s{sT0}, s{sT0}, s{sT1}', f's_add_u32 s{sT0}, s{sT0}, {WS_F2}',
         f'v_add_u32 v{q.pa}, s{sT0}, v{t}'] + poll_load() + poll_check('KVP', poll_load(), flag_cmp())
    o += [f's_lshl_b32 s{sT0}, s{sTB}, 11', f's_add_u32 s{sT0}, s{sT0}, {WS_KVP}']
    for rb in range(16):
        for kk in range(2): o.append(f'buffer_load_dwordx4 {V(g+8*rb+4*kk,4)}, v{q.L16}, {SWS}, s{sT0} offen offset:{kk*1024} sc1')
        o.append(f's_add_u32 s{sT0}, s{sT0}, 0x10000')
    st = 8
    while st >= 1:
        for rb in range(st):
            for r in range(0, 8, 2): o.append(pk('v_pk_add_f32', g+8*rb+r, [g+8*rb+r, g+8*(rb+st)+r]))
        st //= 2
    o += pack8(t, g)
    o += [f's_and_b32 s{sT0}, s{sTB}, 1', f's_lshl_b32 s{sT0}, s{sT0}, 8', f'v_xor_b32 v{t+4}, s{sT0}, v{q.L16}',
          f's_lshl_b32 s{sT0}, s{sTB}, 10', f's_add_u32 s{sT0}, s{sT0}, {WS_KVF}',
          f'buffer_store_dwordx4 {V(t,4)}, v{t+4}, {SWS}, s{sT0} offen sc1', 's_waitcnt vmcnt(0)']
    o += post_flag(q.E, [f's_lshl_b32 s{sT1}, s{sTB}, 6', f's_add_u32 s{sT1}, s{sT1}, {WS_F3}'], sT1)
    o += ['KVR_END:']
    k.extend(o)
    sg.out += k.out; sg.hist = []

class P3: pass
r3 = P3()
_n[0] = 20
r3.trS = alloc(2); r3.trY = alloc(2); r3.aW = alloc(1); r3.aR = alloc(2); r3.oo = alloc(1); r3.t = alloc(16, 4)
r3.x = alloc(8, 4); r3.sl = alloc(16, 4); r3.wf = alloc(24, 4); r3.acc = alloc(32, 4); r3.of = alloc(32, 4); r3.hf = alloc(88, 4)
assert _n[0] <= 256, _n[0]

def phase3(sg):
    t = r3.t; L = q.L; o = []; a = o.append
    a(f's_lshl_b32 s{sT0}, s{sJ}, 2'); a(f's_add_u32 s{sA}, s{sT0}, s{sW}')
    a(f's_lshl_b32 s{sT1}, s{sA}, 6'); a(f's_add_u32 s{sT1}, s{sT1}, {WS_F3}'); a(f'v_mov_b32 v{q.pa}, s{sT1}')
    o += poll_load()
    a(f's_lshl_b32 s{sB_}, s{sTB}, 16'); a(f's_lshl_b32 s{sT1}, s{sA}, 10'); a(f's_add_u32 s{sT0}, s{sB_}, s{sT1}')
    a(f's_add_u32 s{sT2}, s{sT0}, {WS_PQ}')
    pqf = r3.hf; kvf = r3.hf + 8; D = r3.hf + 16
    a(f'buffer_load_dwordx4 {V(pqf,4)}, v{q.L16}, {SWS}, s{sT2} offen sc1')
    a(f's_add_u32 s{sT2}, s{sT2}, 0x8000')
    a(f'buffer_load_dwordx4 {V(pqf+4,4)}, v{q.L16}, {SWS}, s{sT2} offen sc1')
    a(f's_add_u32 s{sC}, s{sT0}, {WS_O}')
    o += ['WAIT stH'] + post_flag(q.E, [f's_lshl_b32 s{sT2}, s{sTB}, 9', f's_lshl_b32 s{sT0}, s{sJ}, 6', f's_add_u32 s{sT2}, s{sT2}, s{sT0}',
                                        f's_lshl_b32 s{sT0}, s{sW}, 4', f's_add_u32 s{sT2}, s{sT2}, s{sT0}', f's_add_u32 s{sCnt}, s{sT2}, {WS_F5}'], sCnt)
    a(f's_add_u32 s{sZ2o[0]}, s{sT2}, {WS_F4}')
    o += stamp(10)
    o += poll_check('F3', poll_load(), flag_cmp())
    a(f's_lshl_b32 s{sT1}, s{sA}, 10'); a(f's_add_u32 s{sT1}, s{sT1}, {WS_KVF}')
    a(f'buffer_load_dwordx4 {V(kvf,4)}, v{q.L16}, {SWS}, s{sT1} offen sc1')
    h, r_, c_ = t, t + 1, t + 2
    a(f'v_lshrrev_b32 v{h}, 5, v{L}'); a(f'v_bfe_u32 v{r_}, v{L}, 2, 2'); a(f'v_and_b32 v{c_}, 3, v{L}'); a(f'v_bfe_u32 v{t+3}, v{L}, 4, 1')
    a(f'v_lshlrev_b32 v{c_}, 3, v{c_}'); a(f'v_lshl_add_u32 v{c_}, v{t+3}, 5, v{c_}')
    a(f'v_lshl_add_u32 v{t+4}, v{h}, 2, v{r_}'); a(f'v_lshl_add_u32 v{t+4}, v{t+4}, 7, v{c_}')
    a(f'v_bfe_u32 v{t+5}, v{L}, 3, 1'); a(f'v_lshl_add_u32 v{t+4}, v{t+5}, 6, v{t+4}')
    a(f's_and_b32 s{sT0}, s{sW}, 1'); a(f's_lshl_b32 s{sT1}, s{sT0}, 15'); a(f'v_add_u32 v{r3.trS}, s{sT1}, v{t+4}'); a(f'v_xor_b32 v{r3.trS+1}, 64, v{r3.trS}')
    a(f's_mul_i32 s{sT1}, s{sT0}, {21*2048}'); a(f's_add_u32 s{sT1}, s{sT1}, {L_WOUT}'); a(f'v_add_u32 v{r3.trY}, s{sT1}, v{t+4}'); a(f'v_xor_b32 v{r3.trY+1}, 64, v{r3.trY}')
    a(f'v_and_b32 v{t+5}, 15, v{L}'); a(f'v_xor_b32 v{t+5}, v{t+5}, v{h}'); a(f'v_lshlrev_b32 v{t+5}, 4, v{t+5}')
    a(f'v_and_b32 v{t+6}, 31, v{L}'); a(f'v_lshl_add_u32 v{t+5}, v{t+6}, 8, v{t+5}')
    a(f's_lshl_b32 s{sT1}, s{sT0}, 14'); a(f's_lshr_b32 s{sT2}, s{sW}, 1'); a(f's_lshl_b32 s{sT2}, s{sT2}, 13'); a(f's_add_u32 s{sT1}, s{sT1}, s{sT2}')
    a(f'v_add_u32 v{r3.aW}, s{sT1}, v{t+5}')
    a(f'v_lshrrev_b32 v{t+5}, 3, v0'); a(f'v_and_b32 v{t+6}, 7, v0'); a(f'v_lshlrev_b32 v{t+7}, 1, v{t+6}'); a(f'v_and_b32 v{t+8}, 15, v{t+5}')
    a(f'v_xor_b32 v{t+7}, v{t+7}, v{t+8}'); a(f'v_lshlrev_b32 v{t+7}, 4, v{t+7}'); a(f'v_lshl_add_u32 v{r3.aR}, v{t+5}, 8, v{t+7}'); a(f'v_xor_b32 v{r3.aR+1}, 16, v{r3.aR}')
    a(f'v_lshlrev_b32 v{t+6}, 4, v{t+6}'); a(f'v_lshl_add_u32 v{r3.oo}, v{t+5}, 10, v{t+6}')
    a(f's_add_u32 s{sZ2o[1]}, s{sB_}, s{sD}')
    a(f'buffer_load_dwordx4 {V(r3.x,4)}, v{r3.oo}, {SX}, s{sZ2o[1]} offen')
    a(f's_add_u32 s{sT1}, s{sZ2o[1]}, 0x8000')
    a(f'buffer_load_dwordx4 {V(r3.x+4,4)}, v{r3.oo}, {SX}, s{sT1} offen')
    for tt in range(2):
        a(f'v_mfma_f32_32x32x16_bf16 {V(D+16*tt,16)}, {V(kvf,4)}, {V(pqf+4*tt,4)}, 0')
    for tt in range(2):
        d = D + 16 * tt
        a(f'v_add_f32 v{d+8}, s{sEps2}, v{d+8}'); a(f'v_rcp_f32 v{d+8}, v{d+8}')
    for tt in range(2):
        d = D + 16 * tt
        for i in range(0, 8, 2): a(pk('v_pk_mul_f32', d+i, [d+i, bc(d+8)]))
        o += pack8(d + 12, d)
        o.append(T(f'buffer_store_dwordx4 {V(d+12,4)}, v{q.L16}, {SWS}, s{sC} offen sc1', 'stO'))
        if tt == 0: a(f's_add_u32 s{sC}, s{sC}, 0x8000')
    o += ['WAIT stO'] + post_flag(q.E, [], sZ2o[0])
    o += stamp(11)
    a(f's_and_b32 s{sT0}, s{sW}, 1'); a(f's_lshl_b32 s{sT0}, s{sT0}, 8'); a(f's_lshl_b32 s{sT1}, s{sTB}, 9'); a(f's_add_u32 s{sT0}, s{sT0}, s{sT1}')
    a(f's_add_u32 s{sT0}, s{sT0}, {WS_F4}'); a(f'v_and_b32 v{t}, 15, v{L}'); a(f'v_lshlrev_b32 v{t}, 4, v{t}'); a(f'v_add_u32 v{q.pa}, s{sT0}, v{t}')
    o += poll_load()
    o += ['WAIT wo wt', 's_barrier'] + dma_d('wl', 0)
    o += poll_check('F4', poll_load(), flag_cmp())
    a(f's_lshr_b32 s{sT0}, s{sW}, 1'); a(f's_lshl_b32 s{sT0}, s{sT0}, 15'); a(f's_and_b32 s{sT1}, s{sW}, 1'); a(f's_lshl_b32 s{sT1}, s{sT1}, 14')
    a(f's_add_u32 s{sT0}, s{sT0}, s{sT1}'); a(f's_add_u32 s{sT0}, s{sT0}, s{sB_}'); a(f's_add_u32 s{sT0}, s{sT0}, {WS_O}')
    ofr = lambda i: (r3.of + 4 * i) if i < 8 else (r3.hf + 56 + 4 * (i - 8))
    for i in range(16):
        a(f'buffer_load_dwordx4 {V(ofr(i),4)}, v{q.L16}, {SWS}, s{sT0} offen offset:{(i & 3)*1024} sc1')
        if i & 3 == 3 and i < 15: a(f's_add_u32 s{sT0}, s{sT0}, 4096')
    a(f's_lshr_b32 s{sT0}, s{sW}, 1'); a(f's_lshl_b32 s{sT0}, s{sT0}, 5'); a(f's_lshl_b32 s{sT1}, s{sTB}, 9'); a(f's_add_u32 s{sT0}, s{sT0}, s{sT1}')
    a(f's_add_u32 s{sT0}, s{sT0}, {WS_F5}'); a(f'v_bfe_u32 v{t}, v{L}, 1, 3'); a(f'v_lshlrev_b32 v{t}, 6, v{t}'); a(f'v_and_b32 v{t+1}, 1, v{L}')
    a(f'v_lshl_add_u32 v{t}, v{t+1}, 4, v{t}'); a(f'v_add_u32 v{q.pa}, s{sT0}, v{t}')
    o += poll_load()
    sg.extend(o)
    def gemm(nk, tr, frag, extra=None):
        o = []
        def rd(i): return [f'ds_read_b64_tr_b16 {V(r3.wf+8*(i%3)+4*T_+2*k,2)}, v{tr+T_} offset:{i*2048+k*1024}' for T_ in range(2) for k in range(2)]
        o += rd(0) + rd(1)
        for i in range(nk):
            for T_ in range(2):
                d = V(r3.acc + 16 * T_, 16)
                o.append(f'v_mfma_f32_32x32x16_bf16 {d}, {V(r3.wf+8*(i%3)+4*T_,4)}, {V(frag(i),4)}, {"0" if i == 0 else d}')
                if i + 2 < nk: o += rd(i + 2)[2*T_:2*T_+2]
            if extra and i in extra: o += extra[i]
        return o
    def xw(base):
        o = []
        for dt in range(2):
            for i in range(4):
                o.append(f'v_xor_b32 v{t+4*dt+i}, {(8*dt+2*i)*16}, v{r3.aW}')
        for dt in range(2):
            for i in range(4):
                o.append(T(f'ds_write_b128 v{t+4*dt+i}, {V(r3.acc+16*dt+4*i,4)} offset:{base}', 'xw'))
        return o
    def xr(base, dst, tmp):
        o = []
        for e in range(2):
            for k in range(2):
                o.append(f'ds_read_b128 {V(dst+8*e+4*k,4)}, v{r3.aR+k} offset:{base+e*8192}')
                o.append(f'ds_read_b128 {V(tmp+8*e+4*k,4)}, v{r3.aR+k} offset:{base+16384+e*8192}')
        for i in range(0, 16, 2): o.append(pk('v_pk_add_f32', dst+i, [dst+i, tmp+i]))
        return o
    hl = [f's_lshr_b32 s{sT0}, s{sW}, 1', f's_lshl_b32 s{sT1}, s{sTB}, 1', f's_add_u32 s{sT0}, s{sT0}, s{sT1}', f's_mul_i32 s{sT0}, s{sT0}, {43*1024}',
          f's_and_b32 s{sT1}, s{sW}, 1', f's_mul_i32 s{sT2}, s{sT1}, {21*1024}', f's_add_u32 s{sT0}, s{sT0}, s{sT2}', f's_add_u32 s{sT0}, s{sT0}, {WS_H}',
          f's_cmp_eq_u32 s{sT1}, 1', f's_cselect_b32 s{sT1}, {OOB}, s{sT0}']
    for i in range(22):
        so = sT1 if i == 0 else sT0
        hl.append(f'buffer_load_dwordx4 {V(r3.hf+4*i,4)}, v{q.L16}, {SWS}, s{so} offen offset:{(i & 3)*1024} sc1')
        if i & 3 == 3: hl.append(f's_add_u32 s{sT0}, s{sT0}, 4096')
    sg.extend(gemm(16, r3.trS, ofr))
    sg.extend(stamp(12))
    sg.extend(poll_check('F5', poll_load(), flag_cmp()) + hl)
    sg.extend(['WAIT wl', 's_barrier'] + xw(0) + ['WAIT xw', 's_barrier'] + xr(0, r3.sl, r3.of))
    sg.extend(gemm(22, r3.trY, lambda i: r3.hf + 4 * i))
    sg.extend(xw(32768) + ['WAIT xw', 's_barrier'])
    y = r3.hf; u = r3.hf + 16; xx = r3.hf + 32
    o = xr(32768, y, u); a = o.append
    for i in range(8): a(f'v_lshlrev_b32 v{xx+2*i}, 16, v{r3.x+i}'); a(f'v_and_b32 v{xx+2*i+1}, 0xffff0000, v{r3.x+i}')
    for i in range(0, 16, 2): a(pk('v_pk_mul_f32', u+i, [y+i, S(sL2e2, 2)]))
    for i in range(16): a(f'v_exp_f32 v{u+i}, -v{u+i}')
    for i in range(0, 16, 2): a(pk('v_pk_mul_f32', y+i, [y+i, r3.sl+i]))
    for i in range(16): a(f'v_add_f32 v{u+i}, 1.0, v{u+i}')
    for i in range(16): a(f'v_rcp_f32 v{u+i}, v{u+i}')
    for i in range(0, 16, 2): a(pk('v_pk_fma_f32', y+i, [y+i, u+i, xx+i]))
    for i in range(8): a(f'v_cvt_pk_bf16_f32 v{u+i}, v{y+2*i}, v{y+2*i+1}')
    a(f'buffer_store_dwordx4 {V(u,4)}, v{r3.oo}, {SOUT}, s{sZ2o[1]} offen')
    a(f's_add_u32 s{sT1}, s{sZ2o[1]}, 0x8000')
    a(f'buffer_store_dwordx4 {V(u+4,4)}, v{r3.oo}, {SOUT}, s{sT1} offen')
    sg.extend(o)
    if STAMPS:
        o = ['s_waitcnt vmcnt(0)'] + stamp(13)
        o += [f's_lshl_b32 s{sT0}, s2, 2', f's_add_u32 s{sT0}, s{sT0}, s{sW}', f's_lshl_b32 s{sT0}, s{sT0}, 6', f's_add_u32 s{sT0}, s{sT0}, {WS_DBG}', 's_mov_b64 exec, 1']
        for k, r in enumerate(STAMP_REGS):
            o += [f'v_mov_b32 v{t}, s{r}', f'buffer_store_dword v{t}, off, {SWS}, s{sT0} offset:{4*k}']
        sg.extend(o)

def build():
    global PRO_TMP
    head = Seg()
    head._emit(I('s_cmp_ge_u32 s2, 256')); head._emit(I('s_cbranch_scc1 END'))
    if STAMPS: head._emit(I('s_memrealtime s[98:99]'))
    head._emit(I('s_load_dwordx16 s[48:63], s[0:1], 0')); head._emit(I('s_load_dwordx4 s[64:67], s[0:1], 64')); head._emit(I('s_load_dwordx2 s[68:69], s[0:1], 80'))
    pro, PRO_TMP = prologue()
    head.extend(pro)
    head.extend(['s_waitcnt lgkmcnt(0)'] + srd(SX, 48, 2048*1024) + srd(SWI, 56, 512*2752) + srd(SWS, 68, WS_SIZE) + srd(SWA, 50, 512*3072))
    txt = [head.text()]
    if STAMPS: txt.append('  s_mov_b32 s50, s98')
    txt.append(f'  s_cmp_ge_u32 s{sG}, 12\n  s_cbranch_scc1 PROG_C\n  s_cmp_ge_u32 s{sG}, 8\n  s_cbranch_scc1 PROG_B')
    for prog in 'ABC':
        sg = phase1(prog)
        txt.append(f'PROG_{prog}:\n' + sg.text())
        if prog != 'C': txt.append('  s_branch PHASE2')
    sg = Seg(vmq=[(None, set())])
    sg.extend(['PHASE2:'] + phase2_setup() + stamp(9))
    sg.extend([f's_cmp_eq_u32 s{sJ}, 7', 's_cbranch_scc1 LIGHT'])
    vm0 = list(sg.vmq)
    gemm2_main(sg)
    vm_main = list(sg.vmq)
    sg.extend(['PHASE3:'])
    lt = Seg(vmq=vm0); lt.extend(['LIGHT:']); gemm2_light(lt)
    lt.extend(['s_waitcnt vmcnt(0) lgkmcnt(0)', 's_branch PHASE3'])
    phase3(sg)
    txt.append(sg.text())
    txt.append('END:\n  s_endpgm')
    txt.append(lt.text())
    txt += slow_blocks
    txt.append('  s_endpgm\nCODE_END:')
    body = '\n'.join(txt)
    hdr = open('recurrent_scan__linear_attn_block__mixer_gmlp__prompt.s.ref').read().split('; Override launch')[0]
    return hdr + f'''; @launch grid=(256,1,1) block=(256,1,1) lds={LDS_BYTES}
.amdgcn_target "amdgcn-amd-amdhsa--gfx950"
.text
.globl {NAME}
.p2align 8
.type {NAME},@function
{NAME}:
KSTART:

{body}
.section .rodata,"a"
.p2align 6
.amdhsa_kernel {NAME}
  .amdhsa_next_free_vgpr 512
  .amdhsa_next_free_sgpr 102
  .amdhsa_accum_offset 256
  .amdhsa_group_segment_fixed_size 0
  .amdhsa_kernarg_size 88
  .amdhsa_user_sgpr_count 2
  .amdhsa_user_sgpr_kernarg_segment_ptr 1
  .amdhsa_system_sgpr_workgroup_id_x 1
.end_amdhsa_kernel
'''

if __name__ == '__main__':
    out = sys.argv[1] if len(sys.argv) > 1 else 'recurrent_scan__linear_attn_block__mixer_gmlp__prompt.s'
    open(out, 'w').write(build())
```

```python
import sys, os, struct
from ir import *
STAMPS = [x for x in os.environ.get('STAMPS', '').split(',') if x]
NAME = 'recurrent_scan__linear_attn_block__mixer_gmlp__prompt_kernel'
def env(k, d): return int(os.environ.get(k, d))
def f2u(x): return struct.unpack('<I', struct.pack('<f', x))[0]
def fx(x): return '0x%08x' % f2u(x)
def V(a, n=1): return f'v{a}' if n == 1 else f'v[{a}:{a+n-1}]'
def A(a, n=1): return f'a{a}' if n == 1 else f'a[{a}:{a+n-1}]'
def S(a, n=1): return f's{a}' if n == 1 else f's[{a}:{a+n-1}]'
WS_F1 = 0x1000; WS_F2 = 0x4000; WS_F4 = 0x6000; WS_F5 = 0x8000
WS_STATS = 0x20000; WS_KVF = 0x80000
WS_PQ = 0x200000; WS_O = 0x400000; WS_Z1 = 0x600000; WS_H = 0x900000; WS_Z2T = 0xC00000
WS_DBG = 0xF00000; WS_KVP = 0x1000000; WS_SIZE = 0x1200000
OOB = 0x7F000000
SPIN = env('SPIN', 200000)
POLL1, POLL2, F1P, PFA = env('POLL1', 44), env('POLL2', 52), env('F1P', 72), env('PFA', 24)
SX, SWS, SWO, SWOUT, SOUT, SWA, SWI, SSP, SB, SDBG = [S(4 + 4 * i, 4) for i in range(10)]
sW, sRB, sG, sTB = 44, 45, 46, 47
sC7 = 3; sJ = 83
sTag2, sTag, sW4K, sT0, sT1, sT2, sCnt = 70, 71, 72, 73, 74, 75, 76
sXo, sSo1, sSo0 = 77, 78, 79
sWb = [80, 81, 82]
sEps2, sL2e2, sMaskLo, sST = 84, 86, 88, 90
sA, sB_, sC, sD = 91, 92, 93, 94
sFirst = 99
sF = [40, 41, 42] if not env('DIAG', 0) else [88, 89, 3]
sR1, sR2 = 0, 1
ROT = env('ROT', 1)

STAMP_REGS = list(range(50, 64))
SLOT = 16384; SC = 131072
L_CS = SC; L_XS = SC + 1024; L_ZS = SC + 2048; L_Z2 = SC + 3072; L_TZ = SC + 4096
L_WOUT = 65536; L_RED = 139264; LDS_BYTES = 163840
C0 = -2.0 * 1.4426950408889634 * 0.7978845608028654
C1 = C0 * 0.044715
LOG2E = 1.4426950408889634
slow_blocks = []
class Alloc:
    def __init__(self, n): self.n = n
    def __call__(self, k, align=1):
        while self.n % align: self.n += 1
        r = self.n; self.n += k; return r
def stamp(name):
    if not STAMPS: return []
    if name == 'end': idx = 13
    elif name in STAMPS: idx = 1 + STAMPS.index(name)
    else: return []
    o = [I('s_memrealtime s[88:89]'), f'v_writelane_b32 v0, s88, {idx}']
    return o
def poll_check(name, loads, cmp_ins):
    blk = [f'SLOW_{name}:', f's_mov_b32 s{sCnt}, {SPIN}', f'SLOWL_{name}:'] + loads + ['s_waitcnt vmcnt(0)'] + cmp_ins + \
          ['s_nop 1', f's_cbranch_vccz RET_{name}', f's_sub_u32 s{sCnt}, s{sCnt}, 1', f's_cmp_lg_u32 s{sCnt}, 0',
           f's_cbranch_scc1 SLOWL_{name}', f's_branch RET_{name}']
    sg = Seg(); sg.extend(blk); slow_blocks.append(sg.text())
    return cmp_ins + [f's_cbranch_vccnz SLOW_{name}', f'RET_{name}:']
def post_flag(vtmp, pre, sreg):
    return pre + [f'v_mov_b32 v{vtmp}, s{sTag}', 's_mov_b64 exec, 1', f'buffer_store_dword v{vtmp}, off, {SWS}, s{sreg} sc1', 's_mov_b64 exec, -1']
def bc(reg): return (V(reg & ~1, 2), reg & 1)
def pk(op, d, srcs):
    txt = []; lo = []; hi = []
    for s in srcs:
        if isinstance(s, tuple): txt.append(s[0]); lo.append(s[1]); hi.append(s[1])
        elif isinstance(s, str): txt.append(s); lo.append(0); hi.append(1)
        else: txt.append(V(s, 2)); lo.append(0); hi.append(1)
    return f'{op} {V(d, 2)}, {", ".join(txt)} op_sel:[{",".join(map(str, lo))}] op_sel_hi:[{",".join(map(str, hi))}]'
def pack8(dst, src): return [f'v_cvt_pk_bf16_f32 v{dst+i}, v{src+2*i}, v{src+2*i+1}' for i in range(4)]
def srd(dst, ptr, nbytes):
    b = int(dst[2:].split(':')[0])
    return [f's_mov_b32 s{b}, s{ptr}', f's_mov_b32 s{b+1}, s{ptr+1}', f's_mov_b32 s{b+2}, {nbytes}', f's_mov_b32 s{b+3}, 0x20000']
def late_srds(): return srd(SSP, 58, 2048*4096) + srd(SWO, 52, 512*1024) + srd(SWOUT, 62, 688*1024) + srd(SOUT, 64, 2048*1024) + srd(SB, 60, 4096) + srd(SDBG, 66, 256)
def zipn(a, groups, lim=60):
    out = []; lim = min(lim, len(a)); pos = {(k * lim) // len(groups): g for k, g in enumerate(groups)}
    for i, x in enumerate(a):
        if i in pos: out += pos[i]
        out.append(x)
    return out

def sflag_check(name, regs, loads):
    o = [f's_xor_b64 {S(r,2)}, {S(r,2)}, {S(sTag2,2)}' for r in regs]
    r = list(regs)
    while len(r) > 1:
        o += [f's_or_b64 {S(r[i],2)}, {S(r[i],2)}, {S(r[i+1],2)}' for i in range(0, len(r) - 1, 2)]
        r = r[0::2]
    blk = [f'SLOW_{name}:', f's_mov_b32 s{sCnt}, {SPIN}', f'SLOWL_{name}:'] + [T(l + ' glc', 'async') for l in loads] + ['s_waitcnt lgkmcnt(0)'] + o + \
          [f's_cbranch_scc0 RET_{name}', f's_sub_u32 s{sCnt}, s{sCnt}, 1', f's_cmp_lg_u32 s{sCnt}, 0', f's_cbranch_scc1 SLOWL_{name}', f's_branch RET_{name}']
    sg = Seg(); sg.extend(blk); slow_blocks.append(sg.text())
    return o + [f's_cbranch_scc1 SLOW_{name}', f'RET_{name}:']
def sl(loads): return [T(l, 'async') for l in loads]
```

```python
from common import *

class P1: pass
p = P1()
al = Alloc(1)
p.L = al(1); p.L16 = al(1); p.E = al(1); p.dum = al(1)
p.offX = al(4); p.offS = p.offX; p.offWa = al(4); p.offWb = al(4)
p.xp = [al(4), al(4)]; p.xo = [al(4), al(4)]
p.tr = [al(2), al(2)]
p.aXS = al(1); p.aXL = al(1); p.aCSb = al(1); p.aCSa = al(1); p.aTZw = al(1); p.aTZr = al(1); p.aST = al(1); p.aZS = al(1); p.ones = al(1)
p.st = al(4, 2)
p.k = [al(6, 2), al(6, 2)]
p.wf = al(16, 4); p.csacc = al(4, 4); p.sel = al(4, 4)
p.acc = al(96, 4); p.pk = al(16, 4); p.t = al(48, 4)
assert al.n <= 256, al.n
NEGM = lambda rt: p.k[rt]; RR = lambda rt: p.k[rt] + 1; IR_ = lambda rt: p.k[rt] + 2; RC0 = lambda rt: p.k[rt] + 3; R3C1 = lambda rt: p.k[rt] + 4
def acc(pc, rt, r=0): return p.acc + 32 * pc + 16 * rt + r
sMH, sTT = 95, 96
sMk = [97, 98]
sZ2o = 100; sD2 = 101
NWF = 4

def prologue():
    o = []; a = o.append; L = p.L; t = p.t
    a(f'v_and_b32 v{L}, 63, v0'); a(f'v_lshrrev_b32 v{t}, 6, v0'); a(f'v_readfirstlane_b32 s{sW}, v{t}')
    a(f'v_lshrrev_b32 v{t+1}, 3, v{L}'); a(f'v_and_b32 v{t+2}, 7, v{L}'); a(f'v_lshrrev_b32 v{t+3}, 4, v{L}')
    a(f'v_xor_b32 v{t+4}, v{t+2}, v{t+3}'); a(f'v_lshlrev_b32 v{t+4}, 4, v{t+4}')
    a(f'v_lshl_add_u32 v{p.offX}, v{t+1}, 10, v{t+4}'); a(f'v_xor_b32 v{t+5}, 64, v{p.offX}')
    a(f'v_add_u32 v{p.offX+1}, 7168, v{t+5}'); a(f'v_add_u32 v{p.offX+2}, {2*7168}, v{p.offX}'); a(f'v_add_u32 v{p.offX+3}, {3*7168}, v{t+5}')
    a(f's_and_b32 s{sT0}, s2, 1'); a(f's_bfe_u32 s{sT1}, s2, 0x20001'); a(f's_bfe_u32 s{sC7}, s2, 0x30003')
    a(f's_lshl_b32 s{sRB}, s{sT0}, 3'); a(f's_add_u32 s{sRB}, s{sRB}, s{sC7}')
    a(f's_lshl_b32 s{sTB}, s{sT1}, 3'); a(f's_add_u32 s{sTB}, s{sTB}, s{sC7}')
    a(f's_lshr_b32 s{sT2}, s2, 6')
    a(f's_lshl_b32 s{sG}, s{sT2}, 2'); a(f's_add_u32 s{sG}, s{sG}, s{sT1}')
    a(f's_lshl_b32 s{sJ}, s{sT0}, 2'); a(f's_add_u32 s{sJ}, s{sJ}, s{sT2}')
    a(f's_lshl_b32 s{sW4K}, s{sW}, 12')
    a(f's_lshl_b32 s{sST}, s{sRB}, 2'); a(f's_add_u32 s{sST}, s{sST}, s{sW}')
    a(f's_lshl_b32 s{sXo}, s{sST}, 15')
    a(f'v_and_b32 v{t+6}, 1, v{t+3}'); a(f'v_lshlrev_b32 v{t+6}, 2, v{t+6}'); a(f'v_xor_b32 v{t+6}, v{t+6}, v{t+2}'); a(f'v_lshlrev_b32 v{t+6}, 4, v{t+6}')
    a(f's_lshl_b32 s{sT0}, s{sW}, 5'); a(f'v_add_u32 v{t+7}, s{sT0}, v{t+1}')
    a(f's_movk_i32 s{sT0}, 2752'); a(f'v_mad_u32_u24 v{p.offWa}, v{t+7}, s{sT0}, v{t+6}')
    for i in range(1, 4): a(f'v_add_u32 v{p.offWa+i}, {i*(8*2752-1024)}, v{p.offWa}')
    return o
SWZW, ROWW = p.t + 6, p.t + 7

def rot_setup():
    return [f's_lshr_b32 s{sR2}, s2, 6', f's_add_u32 s{sR1}, s{sR2}, s{sRB}', f's_lshl_b32 s{sR2}, s{sR2}, 1', f's_add_u32 s{sR2}, s{sR2}, s{sC7}'] if ROT else \
           [f's_mov_b32 s{sR1}, 0', f's_mov_b32 s{sR2}, 0']
def rot(dst, r, c, mask, mul, base, add=0):
    o = [f's_add_u32 s{dst}, s{r}, {c}', f's_and_b32 s{dst}, s{dst}, {mask}', f's_mul_i32 s{dst}, s{dst}, {mul}', f's_add_u32 s{dst}, s{dst}, s{base}']
    if add: o.append(f's_add_u32 s{dst}, s{dst}, {add}')
    return o
def dma_item(kind, idx, slot, prog):
    so = sT0
    o = [f's_add_u32 m0, s{sW4K}, {slot*SLOT}']
    if kind == 'X':
        off, rs = p.offX, SX; o += rot(so, sR1, idx >> 1, 3, 256, sXo) if idx != 1 else []
        if idx & 1: o.append(f's_add_u32 s{so}, s{so}, 128')
    elif kind == 'S':
        off, rs = p.offS, SSP; o += rot(so, sR2, idx >> 1, 7, 128, sSo1 if idx & 1 else sSo0)
    else:
        pc, cc = idx >> 2, idx & 3
        win = (pc == 0 or prog == 'C')
        off, rs = (p.offWa, SWI) if win else (p.offWb, SWA)
        o += rot(so, sR1, cc, 3, 128*(2752 if win else 3072), sWb[pc])
    for i in range(4):
        o.append(T(f'buffer_load_dwordx4 v{off+i}, {rs}, s{so} offen offset:{i*1024} lds', f'{kind}{idx}'))
    return o

def x_reads(q, slot, tmp):
    rg = slot >> 2; so = (slot & 3) * SLOT; o = []
    for j in range(4): o.append(T(f'ds_read_b128 {V(tmp+4*j,4)}, v{p.xo[rg]+j} offset:{so}', 'xr'))
    for rt in range(2):
        for j in range(4): o.append(T(f'ds_read_b128 {A(128*rt+16*q+4*j,4)}, v{p.xp[rg]+j} offset:{so+rt*4096}', 'xr'))
    return o
def x_stats(tmp):
    o = []
    for r in range(16):
        k = 2 * (r & 1)
        o.append(f'v_dot2c_f32_bf16 v{p.st+k}, v{tmp+r}, v{p.ones}'); o.append(f'v_dot2c_f32_bf16 v{p.st+k+1}, v{tmp+r}, v{tmp+r}')
    return o
def consume_S(i, slot):
    rg = slot >> 2; base = 128 * (i & 1) + 16 * (i >> 1)
    return [f'WAIT S{i}'] + [T(f'ds_read_b128 {A(base+4*j,4)}, v{p.xo[rg]+j} offset:{(slot & 3)*SLOT}', f'sr{i}') for j in range(4)]

WSLOT = {0: 2, 1: 5, 2: 0, 3: 4, 4: 2, 5: 6, 6: 7, 7: 5, 8: 1, 9: 3, 10: 0, 11: 4}
def w_reads(n):
    s = WSLOT[n >> 3]; rg = s >> 2; j = n & 7; d = p.wf + 4 * (n % NWF)
    return [f'ds_read_b64_tr_b16 {V(d+2*rd,2)}, v{p.tr[rg]+(j & 1)} offset:{(s & 3)*SLOT + (j & ~1)*2048 + rd*512}' for rd in range(2)]
def cs_mfma(n):
    cin = '0' if n & 31 == 0 else V(p.csacc, 4)
    return f'v_mfma_f32_16x16x32_bf16 {V(p.csacc,4)}, {V(p.sel,4)}, {V(p.wf+4*(n % NWF),4)}, {cin}'
def main_mfma(n, rt, atype):
    pc = n >> 5; kk = n & 31
    d = V(acc(pc, rt), 16); w = V(p.wf + 4 * (n % NWF), 4); x = A(128 * rt + 4 * kk, 4)
    cin = '0' if kk == 0 else d
    return f'v_mfma_f32_32x32x16_bf16 {d}, {x}, {w}, {cin}' if atype else f'v_mfma_f32_32x32x16_bf16 {d}, {w}, {x}, {cin}'

def xstat_finalize():
    t = p.t + 40; o = []; a = o.append
    a(f'v_add_f32 v{p.st}, v{p.st}, v{p.st+2}'); a(f'v_add_f32 v{p.st+1}, v{p.st+1}, v{p.st+3}')
    a(f'v_permlane32_swap_b32 v{p.st}, v{p.st+1}'); a(f'v_add_f32 v{p.st}, v{p.st}, v{p.st+1}')
    a(f'v_mov_b32 v{p.st+1}, v{p.st}'); a(f'v_permlane32_swap_b32 v{p.st}, v{p.st+1}')
    a(f'v_mul_f32 v{t+1}, {fx(-1/512)}, v{p.st}'); a(f'v_mul_f32 v{t}, {fx(1/512)}, v{p.st+1}')
    a(f'v_fma_f32 v{t}, -v{t+1}, v{t+1}, v{t}'); a(f'v_max_f32 v{t}, 0, v{t}'); a(f'v_add_f32 v{t}, {fx(1e-5)}, v{t}')
    a(f'v_rsq_f32 v{t}, v{t}')
    a(f'v_cmp_gt_u32 vcc, 32, v{p.L}'); a(f'v_lshlrev_b32 v{t+2}, 2, v{p.L}'); a(f'v_add_u32 v{t+2}, s{sA}, v{t+2}')
    a(f'v_cndmask_b32 v{t}, v{t}, v{t+1}, vcc')
    o.append(T(f'ds_write_b32 v{t+2}, v{t}', 'csadd'))
    return o
def xstat_fetch():
    o = []; t = p.t + 40
    for rt in range(2):
        o += [f'ds_read_b32 v{NEGM(rt)}, v{p.aXL} offset:{rt*256}', f'ds_read_b32 v{RR(rt)}, v{p.aXL} offset:{rt*256+128}']
    for rt in range(2):
        o += [f'v_rcp_f32 v{IR_(rt)}, v{RR(rt)}', f'v_mul_f32 v{RC0(rt)}, {fx(C0)}, v{RR(rt)}', f'v_mul_f32 v{t+2*rt}, v{RR(rt)}, v{RR(rt)}',
              f'v_mul_f32 v{t+2*rt+1}, {fx(C1)}, v{RR(rt)}', f'v_mul_f32 v{R3C1(rt)}, v{t+2*rt}, v{t+2*rt+1}']
    return o
def csb_reads(pc, dst): return [f'ds_read_b128 {V(dst+4*i,4)}, v{p.aCSb} offset:{pc*256 + i*32}' for i in range(4)]

def gelu(pc, rt, hp, cs, tmp, mode, st=None):
    o = []; a = o.append; b = acc(pc, rt, 8 * hp)
    if mode == 'pk':
        R4 = range(0, 8, 2)
        for r in R4: a(pk('v_pk_fma_f32', b+r, [cs+r, bc(NEGM(rt)), b+r]))
        for r in R4: a(pk('v_pk_mul_f32', tmp+r, [b+r, b+r]))
        for r in R4: a(pk('v_pk_fma_f32', tmp+r, [tmp+r, bc(R3C1(rt)), bc(RC0(rt))]))
        for r in R4: a(pk('v_pk_mul_f32', tmp+r, [tmp+r, b+r]))
        for r in range(8): a(f'v_exp_f32 v{tmp+r}, v{tmp+r}')
        for r in R4: a(pk('v_pk_fma_f32', tmp+r, [tmp+r, bc(IR_(rt)), bc(IR_(rt))]))
        for r in range(8): a(f'v_rcp_f32 v{tmp+r}, v{tmp+r}')
        for r in R4: a(pk('v_pk_mul_f32', b+r, [b+r, tmp+r]))
        if st:
            s1, s2, first = st
            for r in R4:
                if first and r == 0: a(f'v_mov_b64 {V(s1,2)}, {V(b,2)}'); a(pk('v_pk_mul_f32', s2, [b, b]))
                else: a(pk('v_pk_add_f32', s1, [s1, b+r])); a(pk('v_pk_fma_f32', s2, [b+r, b+r, s2]))
    else:
        R8 = range(8)
        for r in R8: a(f'v_fmac_f32 v{b+r}, v{cs+r}, v{NEGM(rt)}')
        for r in R8: a(f'v_mul_f32 v{tmp+r}, v{b+r}, v{b+r}')
        for r in R8: a(f'v_fma_f32 v{tmp+r}, v{tmp+r}, v{R3C1(rt)}, v{RC0(rt)}')
        for r in R8: a(f'v_mul_f32 v{tmp+r}, v{tmp+r}, v{b+r}')
        for r in R8: a(f'v_exp_f32 v{tmp+r}, v{tmp+r}')
        for r in R8: a(f'v_fma_f32 v{tmp+r}, v{tmp+r}, v{IR_(rt)}, v{IR_(rt)}')
        for r in R8: a(f'v_rcp_f32 v{tmp+r}, v{tmp+r}')
        for r in R8: a(f'v_mul_f32 v{b+r}, v{b+r}, v{tmp+r}')
    return o
def phi_from_u(b, rsrc, tmp, mode):
    o = []; a = o.append
    if mode == 'pk':
        R4 = range(0, 8, 2)
        for r in R4: a(pk('v_pk_fma_f32', b+r, [b+r, rsrc(r), S(sEps2, 2)]))
        for r in R4: a(pk('v_pk_mul_f32', tmp+r, [b+r, S(sL2e2, 2)]))
        for r in range(8): a(f'v_exp_f32_e64 v{tmp+r}, v{tmp+r} clamp')
        for r in range(8): a(f'v_max_f32 v{b+r}, s{sEps2}, v{b+r}')
        for r in R4: a(pk('v_pk_add_f32', b+r, [b+r, tmp+r]))
    else:
        R8 = range(8)
        for r in R8: a(f'v_fma_f32 v{b+r}, v{b+r}, v{rsrc(r)}, s{sEps2}')
        for r in R8: a(f'v_mul_f32 v{tmp+r}, s{sL2e2}, v{b+r}')
        for r in R8: a(f'v_exp_f32_e64 v{tmp+r}, v{tmp+r} clamp')
        for r in R8: a(f'v_max_f32 v{b+r}, s{sEps2}, v{b+r}')
        for r in R8: a(f'v_add_f32 v{b+r}, v{b+r}, v{tmp+r}')
    return o
def epi_b(pc, mode, isq):
    o = []; t = p.t
    o += csb_reads(pc, t)
    for rt in range(2):
        for hp in range(2):
            b = acc(pc, rt, 8 * hp); cs = t + 8 * hp; tmp = t + 16 + 8 * hp
            if not isq: o += gelu(pc, rt, hp, cs, tmp, mode)
            elif mode == 'pk':
                o += [pk('v_pk_fma_f32', b+r, [cs+r, bc(NEGM(rt)), b+r]) for r in range(0, 8, 2)] + phi_from_u(b, lambda r: bc(RR(rt)), tmp, mode)
            else:
                o += [f'v_fmac_f32 v{b+r}, v{cs+r}, v{NEGM(rt)}' for r in range(8)] + phi_from_u(b, lambda r: RR(rt), tmp, mode)
            d = p.pk + 8 * rt + 4 * hp
            o += pack8(d, b)
            o.append(T(f'buffer_store_dwordx4 {V(d,4)}, v{p.L16}, {SWS}, s{sD2 if rt else sD} offen offset:{hp*1024} sc1', 'st2'))
    return o
def epi_a(pc, mode, is_k, dstpk):
    o = []; t = p.t; csl = t + 40; tmp = t + 32
    o.append(f'ds_read_b32 v{csl}, v{p.aCSa} offset:{pc*256}')
    def rd(g):
        rt, hp = g >> 1, g & 1; nm = t + 16 * (g & 1); r = []
        for i2 in range(2):
            r.append(f'ds_read_b128 {V(nm+4*i2,4)}, v{p.aXS} offset:{rt*256+(2*hp+i2)*32}')
            r.append(f'ds_read_b128 {V(nm+8+4*i2,4)}, v{p.aXS} offset:{rt*256+128+(2*hp+i2)*32}')
        return r
    o += rd(0) + rd(1)
    for g in range(4):
        rt, hp = g >> 1, g & 1; nm = t + 16 * (g & 1); rr = nm + 8; b = acc(pc, rt, 8 * hp)
        if mode == 'pk':
            o += [pk('v_pk_fma_f32', b+r, [nm+r, bc(csl), b+r]) for r in range(0, 8, 2)]
            body = phi_from_u(b, lambda r: rr + r, tmp, mode) if is_k else [pk('v_pk_mul_f32', b+r, [b+r, rr+r]) for r in range(0, 8, 2)]
            k = 4
        else:
            o += [f'v_fmac_f32 v{b+r}, v{nm+r}, v{csl}' for r in range(8)]
            body = phi_from_u(b, lambda r: rr + r, tmp, mode) if is_k else [f'v_mul_f32 v{b+r}, v{b+r}, v{rr+r}' for r in range(8)]
            k = 8
        o += body[:k] + (rd(g + 2) if g < 2 else []) + body[k:]
        o += pack8(dstpk + 8 * rt + 4 * hp, b)
    return o

def z2_gelu_block(prog, gettag):
    o = []; t = p.t; gen = prog == 'B'; stb = p.pk
    o += csb_reads(0, t) + xstat_fetch()
    for rt in range(2):
        for hp in range(2):
            st = (stb + 8 * rt + 4 * hp, stb + 8 * rt + 4 * hp + 2, True) if gen else (stb + 8 * rt, stb + 8 * rt + 2, hp == 0)
            o += gelu(0, rt, hp, t + 8 * hp, t + 16 + 8 * hp, 'pk', st)
    for rt in range(2):
        s1, s2 = t + 32 + 2 * rt, t + 33 + 2 * rt; b = stb + 8 * rt
        if gen:
            for hp in range(2):
                o += [f'v_add_f32 v{b+4*hp}, v{b+4*hp}, v{b+4*hp+1}', f'v_add_f32 v{b+4*hp+2}, v{b+4*hp+2}, v{b+4*hp+3}']
            for hp in range(2):
                o += [f'v_and_b32 v{b+4*hp}, s{sMk[hp]}, v{b+4*hp}', f'v_and_b32 v{b+4*hp+2}, s{sMk[hp]}, v{b+4*hp+2}']
            o += [f'v_add_f32 v{s1}, v{b}, v{b+4}', f'v_add_f32 v{s2}, v{b+2}, v{b+6}']
        else:
            o += [f'v_add_f32 v{s1}, v{b}, v{b+1}', f'v_add_f32 v{s2}, v{b+2}, v{b+3}']
    for rt in range(2): o.append(f'v_permlane32_swap_b32 v{t+32+2*rt}, v{t+33+2*rt}')
    for rt in range(2): o.append(f'v_add_f32 v{t+32+2*rt}, v{t+32+2*rt}, v{t+33+2*rt}')
    for rt in range(2): o.append(T(f'ds_add_f32 v{p.aZS}, v{t+32+2*rt} offset:{rt*256}', 'zs'))
    o += gettag + [f's_lshl_b32 s{sT0}, s{sTT}, 8', f'v_add_u32 v{t+36}, s{sT0}, v{p.aZS}', f'v_mov_b32 v{t+39}, s{sTag}', 'WAIT zs', 's_barrier',
          f'ds_read_b32 v{t+38}, v{t+36}', T(f'buffer_store_dwordx2 {V(t+38,2)}, v{p.L16}, {SWS}, s{sB_} offen sc1', 'stS')]
    if gen:
        for rt in range(2):
            for hp in range(2):
                d = p.pk + 8 * rt + 4 * hp
                o += pack8(d, acc(0, rt, 8 * hp))
                so = (sD, sD2)[hp]
                if rt: o.append(f's_add_u32 s{so}, s{so}, {43*1024}')
                o.append(T(f'buffer_store_dwordx4 {V(d,4)}, v{p.L16}, {SWS}, s{so} offen sc1', 'st2'))
    return o
def stats_poll_loads():
    t = p.t; so = ['0', f's{sC}']
    return [f'buffer_load_dwordx4 {V(t+4*i,4)}, v{p.aST}, {SWS}, {so[i >> 2]} offen offset:{(i & 3)*1024} sc1' for i in range(6)]
def stats_check(prog):
    t = p.t
    c = [f'v_xor_b32 v{t+2*k+1}, s{sTag}, v{t+2*k+1}' for k in range(12)]
    for k in range(0, 12, 3): c.append(f'v_or3_b32 v{t+2*k+1}, v{t+2*k+1}, v{t+2*k+3}, v{t+2*k+5}')
    c += [f'v_or3_b32 v{t+1}, v{t+1}, v{t+7}, v{t+13}', f'v_or_b32 v{t+1}, v{t+1}, v{t+19}', f'v_cmp_ne_u32 vcc, 0, v{t+1}']
    return poll_check('ST' + prog, stats_poll_loads(), c)
def z2_stats():
    o = []; a = o.append; b = p.t; c = b + 1
    for k in range(0, 12, 2): a(f'v_add_f32 v{b+2*k}, v{b+2*k}, v{b+2*k+2}')
    a(f'v_add_f32 v{b}, v{b}, v{b+4}'); a(f'v_add_f32 v{b+8}, v{b+8}, v{b+12}'); a(f'v_add_f32 v{b+16}, v{b+16}, v{b+20}')
    a(f'v_add_f32 v{b}, v{b}, v{b+8}'); a(f'v_add_f32 v{b}, v{b}, v{b+16}'); a(f'v_mov_b32 v{c}, v{b}')
    a(f'v_permlane32_swap_b32 v{b}, v{c}')
    a(f'v_mul_f32 v{b}, {fx(-1/688)}, v{b}'); a(f'v_mul_f32 v{c}, {fx(1/688)}, v{c}'); a(f'v_fma_f32 v{c}, -v{b}, v{b}, v{c}'); a(f'v_max_f32 v{c}, 0, v{c}')
    a(f'v_add_f32 v{c}, {fx(1e-5)}, v{c}'); a(f'v_rsq_f32 v{c}, v{c}'); a(f'v_cmp_gt_u32 vcc, 32, v{p.L}'); a(f'v_mul_f32 v{b}, v{b}, v{c}')
    a(f's_lshl_b32 s{sT1}, s{sTT}, 8'); a(f'v_add_u32 v{b+2}, s{sT1}, v{p.aZS}'); a(f'v_cndmask_b32 v{b}, v{c}, v{b}, vcc')
    o.append(T(f'ds_write_b32 v{b+2}, v{b} offset:{L_Z2 - L_ZS}', 'z2s'))
    return o
def z2_normalize():
    o = []; a = o.append; t = p.t
    for rt in range(2):
        for k in range(2): a(f'ds_read_b32 v{t+24*rt+k}, v{p.aXL} offset:{L_Z2 - L_XS + rt*256 + k*128}')
    for rt in range(2):
        m = t + 24 * rt; b = acc(0, rt); d = m + 4; f = m + 12
        for r in range(16): a(f'v_fma_f32 v{b+r}, v{b+r}, v{m+1}, v{m}')
        for i in range(8): a(f'v_cvt_pk_bf16_f32 v{d+i}, v{b+2*i}, v{b+2*i+1}')
        for i in range(4): a(f'ds_write_b64 v{p.aTZw}, {V(d+2*i,2)} offset:{i*16}')
        for ks in range(2):
            for rd in range(2): a(f'ds_read_b64_tr_b16 {V(f+4*ks+2*rd,2)}, v{p.aTZr} offset:{(16*ks+4*rd)*72}')
        for ks in range(2):
            o.append(T(f'buffer_store_dwordx4 {V(f+4*ks,4)}, v{p.L16}, {SWS}, s{sZ2o} offen offset:{rt*2048+ks*1024} sc1', 'stZ'))
    return o

def code_prefetch(prog):
    t = p.t + 44
    return [f's_getpc_b64 s[92:93]', f'PC_{prog}:', f's_sub_u32 s92, s92, PC_{prog}-KSTART', f's_subb_u32 s93, s93, 0', f's_mov_b32 s94, CODE_END-KSTART', f's_mov_b32 s95, 0x20000',
            f's_lshr_b32 s{sT1}, s2, 3', f's_lshl_b32 s{sT1}, s{sT1}, 2', f's_add_u32 s{sT1}, s{sT1}, s{sW}', f's_lshl_b32 s{sT1}, s{sT1}, 10',
            f'v_lshlrev_b32 v{t}, 4, v{p.L}', PF(f'buffer_load_dword v{p.dum}, v{t}, s[92:95], s{sT1} offen')]
def pf_w(pc, prog):
    t = p.t + 44; win = (pc == 0 or prog == 'C'); st = 2752 if win else 3072
    return [f'v_bfe_u32 v{t}, v{p.L}, 1, 4', f'v_mul_u32_u24 v{t}, {st}, v{t}', f'v_and_b32 v{t+1}, 1, v{p.L}', f'v_mul_u32_u24 v{t+1}, 124, v{t+1}', f'v_add_u32 v{t}, v{t}, v{t+1}',
            f's_lshl_b32 s{sT1}, s{sC7}, 2', f's_add_u32 s{sT1}, s{sT1}, s{sW}', f's_mul_i32 s{sT1}, s{sT1}, {16*st}', f's_add_u32 s{sT1}, s{sT1}, s{sWb[pc]}',
            's_mov_b64 exec, 0xffffffff', PF(f'buffer_load_dword v{p.dum}, v{t}, {SWI if win else SWA}, s{sT1} offen'), 's_mov_b64 exec, -1']
def pf_x67():
    t = p.t + 44
    return [f'v_bfe_u32 v{t}, v{p.L}, 1, 3', f'v_lshlrev_b32 v{t}, 10, v{t}', f'v_and_b32 v{t+1}, 1, v{p.L}', f'v_lshl_add_u32 v{t}, v{t+1}, 7, v{t}',
            f's_lshr_b32 s{sT1}, s2, 6', f's_lshl_b32 s{sT1}, s{sT1}, 13', f's_add_u32 s{sT1}, s{sT1}, s{sXo}', f's_add_u32 s{sT1}, s{sT1}, 768',
            's_mov_b64 exec, 0xffff', PF(f'buffer_load_dword v{p.dum}, v{t}, {SX}, s{sT1} offen'), 's_mov_b64 exec, -1']
def pf_wsp2(cls=None):
    o = pf_wsp(0)
    ld = o.pop()
    if cls is not None: o += [f's_cmp_eq_u32 s{sT2}, {cls}', f's_cselect_b32 s{sT1}, s{sT1}, {OOB}']
    return o + [ld, f's_add_u32 s{sT1}, s{sT1}, 8192', PF(ld.text)]
def pf_wsp(half):
    t = p.t + 44
    return [f'v_lshlrev_b32 v{t}, 7, v{p.L}', f's_lshl_b32 s{sT1}, s{sTB}, 2', f's_lshr_b32 s{sT2}, s2, 6', f's_add_u32 s{sT1}, s{sT1}, s{sT2}', f's_lshl_b32 s{sT1}, s{sT1}, 2',
            f's_add_u32 s{sT1}, s{sT1}, s{sW}', f's_lshl_b32 s{sT1}, s{sT1}, 14', f's_add_u32 s{sT1}, s{sT1}, {8192*half}', PF(f'buffer_load_dword v{p.dum}, v{t}, {SSP}, s{sT1} offen')]
def pf_wo():
    t = p.t + 44
    return [f'v_lshlrev_b32 v{t}, 10, v{p.L}', f's_lshl_b32 s{sT1}, s{sC7}, 2', f's_add_u32 s{sT1}, s{sT1}, s{sW}', f's_lshl_b32 s{sT2}, s{sJ}, 7',
            f's_mul_i32 s{sCnt}, s{sT1}, {22*1024}', f's_add_u32 s{sCnt}, s{sCnt}, s{sT2}', f's_lshl_b32 s{sT1}, s{sT1}, 14', f's_add_u32 s{sT1}, s{sT1}, s{sT2}',
            's_mov_b64 exec, 0xffff', PF(f'buffer_load_dword v{p.dum}, v{t}, {SWO}, s{sT1} offen'), 's_mov_b64 exec, 0x3fffff',
            PF(f'buffer_load_dword v{p.dum}, v{t}, {SWOUT}, s{sCnt} offen'), 's_mov_b64 exec, -1']
def poison_h():
    t = p.pk
    o = [f'v_mov_b32 v{t+k}, -1' for k in range(4)]
    o += [f's_lshl_b32 s{sT1}, s{sG}, 1', f's_add_u32 s{sT1}, s{sT1}, s{sTT}', f's_mul_i32 s{sT1}, s{sT1}, 3', f's_lshl_b32 s{sT2}, s{sRB}, 1', f's_add_u32 s{sT2}, s{sT2}, s{sMH}',
          f's_mul_i32 s{sT2}, s{sT2}, 86', f's_add_u32 s{sT2}, s{sT2}, s{sT1}', f's_lshl_b32 s{sT2}, s{sT2}, 10', f's_add_u32 s{sT2}, s{sT2}, {WS_H}',
          f's_cmp_ge_u32 s{sT1}, 85', f's_cselect_b32 s{sT2}, {OOB}, s{sT2}']
    for k in range(2): o.append(T(f'buffer_store_dwordx4 {V(t,4)}, v{p.L16}, {SWS}, s{sT2} offen offset:{k*1024} sc1', 'st2'))
    o += [f's_cmp_ge_u32 s{sT1}, 84', f's_cselect_b32 s{sT2}, {OOB}, s{sT2}',
          T(f'buffer_store_dwordx4 {V(t,4)}, v{p.L16}, {SWS}, s{sT2} offen offset:2048 sc1', 'st2')]
    o += [f's_lshr_b32 s{sT2}, s{sST}, 1', f's_lshl_b32 s{sT2}, s{sT2}, 16', f's_lshl_b32 s{sT1}, s{sG}, 12', f's_add_u32 s{sT2}, s{sT2}, s{sT1}',
          f's_lshl_b32 s{sT1}, s{sTT}, 11', f's_add_u32 s{sT2}, s{sT2}, s{sT1}', f's_add_u32 s{sT2}, s{sT2}, {WS_O}']
    for k in range(2): o.append(T(f'buffer_store_dwordx4 {V(t,4)}, v{p.L16}, {SWS}, s{sT2} offen offset:{k*1024} sc1', 'st2'))
    return o

sU0 = sA
F1L = [f's_buffer_load_dwordx8 s[48:55], {SWS}, s{sF[0]}', f's_buffer_load_dwordx8 s[56:63], {SWS}, s{sF[1]}', f's_buffer_load_dwordx8 s[24:31], {SWS}, s{sF[2]}']
def f1_sload():
    return [f's_mul_i32 s{sU0}, s{sJ}, 3', f's_add_u32 s{sU0}, s{sU0}, 1', f's_cmp_eq_u32 s{sJ}, 7', f's_cselect_b32 s{sU0}, 0, s{sU0}', f's_cselect_b32 s{sT2}, 0, 128',
            f's_lshl_b32 s{sT1}, s{sU0}, 7', f's_lshl_b32 s{sT0}, s{sW}, 5', f's_add_u32 s{sT1}, s{sT1}, s{sT0}', f's_add_u32 s{sF[0]}, s{sT1}, {WS_F1 + 128}',
            f's_add_u32 s{sF[1]}, s{sF[0]}, s{sT2}', f's_add_u32 s{sF[2]}, s{sF[1]}, s{sT2}'] + sl(F1L)

def setup(prog):
    hasz2 = prog != 'C'
    o = []; a = o.append; t = p.t; L = p.L
    a(f's_lshr_b32 s{sMH}, s{sW}, 1'); a(f's_and_b32 s{sTT}, s{sW}, 1')
    row, h, f = t + 8, t + 9, t + 10
    a(f'v_and_b32 v{row}, 31, v{L}'); a(f'v_lshrrev_b32 v{h}, 5, v{L}')
    a(f'v_bfe_u32 v{f}, v{L}, 1, 3'); a(f'v_xor_b32 v{f}, v{f}, v{h}'); a(f'v_lshlrev_b32 v{f}, 4, v{f}'); a(f'v_lshl_add_u32 v{f}, v{row}, 7, v{f}')
    a(f'v_add_u32 v{p.xo[0]}, s{sW4K}, v{f}')
    a(f's_mul_i32 s{sT1}, s{sMH}, {8192 + 32}'); a(f'v_xor_b32 v{p.xp[0]}, s{sT1}, v{f}')
    for j in range(1, 4): a(f'v_xor_b32 v{p.xo[0]+j}, {32*j}, v{p.xo[0]}'); a(f'v_xor_b32 v{p.xp[0]+j}, {32*j}, v{p.xp[0]}')
    a(f'v_mov_b32 v{p.ones}, 0x3f803f80')
    for k in range(4): a(f'v_mov_b32 v{p.st+k}, 0')
    n1 = len(o)
    for j in range(4): a(f'v_add_u32 v{p.xo[1]+j}, 0x10000, v{p.xo[0]+j}'); a(f'v_add_u32 v{p.xp[1]+j}, 0x10000, v{p.xp[0]+j}')
    o += late_srds()
    if prog != 'C':
        a(f's_movk_i32 s{sT1}, 3072'); a(f'v_mad_u32_u24 v{p.offWb}, v{ROWW}, s{sT1}, v{SWZW}')
        for i in range(1, 4): a(f'v_add_u32 v{p.offWb+i}, {i*(8*3072-1024)}, v{p.offWb}')
    a(f's_lshl_b32 s{sT1}, s{sTB}, 1'); a(f's_add_u32 s{sT1}, s{sT1}, s{sMH}')
    a(f's_lshl_b32 s{sSo0}, s{sT1}, 17'); a(f's_lshl_b32 s{sT1}, s{sW}, 10'); a(f's_add_u32 s{sSo0}, s{sSo0}, s{sT1}'); a(f's_xor_b32 s{sSo1}, s{sSo0}, 0x20000')
    r_, c_, g_ = t + 11, t + 12, t + 13
    a(f'v_bfe_u32 v{r_}, v{L}, 2, 2'); a(f'v_and_b32 v{c_}, 3, v{L}'); a(f'v_bfe_u32 v{g_}, v{L}, 4, 1')
    a(f'v_lshlrev_b32 v{c_}, 3, v{c_}'); a(f'v_lshl_add_u32 v{c_}, v{g_}, 5, v{c_}')
    a(f'v_lshl_add_u32 v{t+14}, v{h}, 3, v{r_}'); a(f'v_lshl_add_u32 v{t+15}, v{t+14}, 7, v{c_}')
    a(f'v_bfe_u32 v{t+16}, v{L}, 3, 1'); a(f'v_lshl_add_u32 v{t+15}, v{t+16}, 6, v{t+15}')
    a(f's_lshl_b32 s{sT1}, s{sTT}, 6'); a(f's_lshl_b32 s{sT2}, s{sMH}, 11'); a(f's_or_b32 s{sT1}, s{sT1}, s{sT2}')
    a(f'v_xor_b32 v{p.tr[0]}, s{sT1}, v{t+15}'); a(f'v_xor_b32 v{p.tr[0]+1}, 2048, v{p.tr[0]}')
    for k in range(2): a(f'v_add_u32 v{p.tr[1]+k}, 0x10000, v{p.tr[0]+k}')
    a(f's_lshl_b32 s{sT1}, s{sTT}, 7'); a(f's_add_u32 s{sT1}, s{sT1}, {L_CS}')
    a(f'v_lshl_add_u32 v{p.aCSb}, v{h}, 4, s{sT1}'); a(f'v_lshl_add_u32 v{p.aCSa}, v{row}, 2, s{sT1}')
    a(f's_lshl_b32 s{sA}, s{sW}, 8'); a(f's_add_u32 s{sA}, s{sA}, {L_XS}')
    a(f's_lshl_b32 s{sT1}, s{sMH}, 9'); a(f's_add_u32 s{sT2}, s{sT1}, {L_XS}')
    a(f'v_lshl_add_u32 v{p.aXS}, v{h}, 4, s{sT2}'); a(f'v_lshl_add_u32 v{p.aXL}, v{row}, 2, s{sT2}')
    a(f's_add_u32 s{sT2}, s{sT1}, {L_ZS}'); a(f'v_lshl_add_u32 v{p.aZS}, v{L}, 2, s{sT2}')
    a(f's_mul_i32 s{sT1}, s{sW}, 2304'); a(f's_add_u32 s{sT1}, s{sT1}, {L_TZ}')
    a(f'v_mul_u32_u24 v{p.aTZw}, 72, v{row}'); a(f'v_lshl_add_u32 v{p.aTZw}, v{h}, 3, v{p.aTZw}'); a(f'v_add_u32 v{p.aTZw}, s{sT1}, v{p.aTZw}')
    a(f'v_mul_u32_u24 v{p.aTZr}, 72, v{t+14}'); a(f'v_add3_u32 v{p.aTZr}, v{p.aTZr}, v{c_}, s{sT1}')
    a(f'v_and_b32 v{t+17}, 15, v{L}'); a(f'v_lshlrev_b32 v{t+18}, 2, v{g_}')
    a(f'v_cmp_eq_u32 vcc, v{t+17}, v{t+18}'); a(f'v_cndmask_b32 v{p.sel}, 0, v{p.ones}, vcc')
    for k in range(1, 4): a(f'v_mov_b32 v{p.sel+k}, v{p.sel}')
    a(f's_lshl_b32 s{sT1}, s{sW}, 10'); a(f's_add_u32 s{sT1}, s{sT1}, {SC}'); a(f'v_add_u32 v{t+19}, s{sT1}, v{p.L16}')
    o.append(T(f'ds_write_b128 v{t+19}, {V(p.st,4)}', 'zcs'))
    a(f's_mov_b32 s{sEps2}, {fx(1e-6)}'); a(f's_mov_b32 s{sEps2+1}, {fx(1e-6)}')
    a(f's_mov_b32 s{sL2e2}, {fx(LOG2E)}'); a(f's_mov_b32 s{sL2e2+1}, {fx(LOG2E)}')
    a(f's_or_b32 s{sFirst}, s2, s{sW}')
    if hasz2:
        a(f's_lshr_b32 s{sCnt}, s{sWb[0]}, 7')
        a(f's_sub_u32 s{sT1}, s{sCnt}, 10')
        a(f's_mul_i32 s{sB_}, s{sST}, 6144'); a(f's_add_u32 s{sB_}, s{sB_}, {WS_STATS}'); a(f's_movk_i32 s{sC}, 4096')
        a(f'v_add_u32 v{p.aST}, s{sB_}, v{p.L16}')
        a(f's_lshr_b32 s{sT2}, s{sT1}, 1'); a(f's_lshl_b32 s{sT2}, s{sT2}, 10'); a(f's_add_u32 s{sB_}, s{sB_}, s{sT2}')
        a(f's_and_b32 s{sT2}, s{sT1}, 1'); a(f's_lshl_b32 s{sT2}, s{sT2}, 3'); a(f's_add_u32 s{sB_}, s{sB_}, s{sT2}')
        a(f's_lshl_b32 s{sCnt}, s{sCnt}, 1'); a(f's_add_u32 s{sCnt}, s{sCnt}, s{sTT}')
        a(f's_lshl_b32 s{sT2}, s{sCnt}, 17'); a(f's_andn2_b32 s{sZ2o}, s{sST}, 1'); a(f's_lshl_b32 s{sZ2o}, s{sZ2o}, 11')
        a(f's_add_u32 s{sZ2o}, s{sZ2o}, s{sT2}'); a(f's_add_u32 s{sZ2o}, s{sZ2o}, {WS_Z2T - 21*131072}')
        if prog == 'B':
            a(f's_andn2_b32 s{sD}, s{sST}, 1'); a(f's_mul_i32 s{sD}, s{sD}, {43*1024}'); a(f's_lshl_b32 s{sT2}, s{sCnt}, 11')
            a(f's_add_u32 s{sD}, s{sD}, s{sT2}'); a(f's_add_u32 s{sD}, s{sD}, {WS_Z1}'); a(f's_add_u32 s{sD2}, s{sD}, 1024')
            a(f's_cmp_le_u32 s{sCnt}, 21'); a(f's_cselect_b32 s{sD}, s{sD}, {OOB}'); a(f's_cselect_b32 s{sMk[0]}, 0, -1')
            a(f's_cmp_eq_u32 s{sCnt}, 20'); a(f's_cselect_b32 s{sD2}, s{sD2}, {OOB}'); a(f's_cselect_b32 s{sMk[1]}, 0, -1'); a(f's_cselect_b32 s{sZ2o}, {OOB}, s{sZ2o}')
            a(f's_cmp_eq_u32 s{sCnt}, 43'); a(f's_cselect_b32 s{sZ2o}, {OOB}, s{sZ2o}'); a(f's_cselect_b32 s{sMk[0]}, 0, s{sMk[0]}'); a(f's_cselect_b32 s{sMk[1]}, 0, s{sMk[1]}')
    return o[:n1], o[n1:]

def phase1(prog):
    sg = Seg()
    atype = {'A': [0, 1, 1], 'B': [0, 0, 0], 'C': [0, 0, 0]}[prog]
    hasz2 = prog != 'C'; t = p.t
    o = []; a = o.append
    a(f'buffer_load_dword v{p.E}, off, {SWS}, 0 sc1')
    o += dma_item('X', 0, 0, prog) + dma_item('X', 1, 1, prog)
    if prog == 'A':
        a(f's_lshl_b32 s{sT0}, s{sG}, 7')
        a(f's_add_u32 s{sWb[0]}, s{sT0}, {11*128}'); a(f's_add_u32 s{sWb[1]}, s{sT0}, 1024'); a(f's_add_u32 s{sWb[2]}, s{sT0}, 2048')
    else:
        a(f's_and_b32 s{sT1}, s{sG}, 3'); a(f's_lshl_b32 s{sT0}, s{sT1}, 3')
        a(f's_lshr_b32 s{sT0}, {0x150A1413 if prog == "B" else 0x08060300}, s{sT0}'); a(f's_and_b32 s{sT0}, s{sT0}, 0xff'); a(f's_lshl_b32 s{sWb[0]}, s{sT0}, 7')
        if prog == 'B': a(f's_lshl_b32 s{sWb[1]}, s{sT1}, 8'); a(f's_add_u32 s{sWb[2]}, s{sWb[1]}, 128')
        else: a(f's_add_u32 s{sWb[1]}, s{sWb[0]}, 128'); a(f's_add_u32 s{sWb[2]}, s{sWb[0]}, 256')
    o += dma_item('W', 0, 2, prog) + code_prefetch(prog)
    s1, s2 = setup(prog)
    o += s1
    if env('PFW', 0): o += pf_w(1, prog) + pf_w(2, prog)
    if env('STG', 1) and prog == 'C': o += srd(SSP, 58, 2048*4096) + pf_wsp2()
    o += [f'v_lshlrev_b32 v{p.L16}, 4, v{p.L}']
    o += zipn(s2, [dma_item('X', 2, 3, prog), dma_item('X', 3, 4, prog), dma_item('W', 1, 5, prog)])
    o += stamp('issued') + ['WAIT X1 zcs', 's_barrier'] + stamp('x0')
    o += [f's_cmp_eq_u32 s{sFirst}, 0', f's_cbranch_scc1 EPOCH_{prog}', f'EPOCHR_{prog}:']
    eb = Seg(); eb.extend([f'EPOCH_{prog}:', f'v_add_u32 v{p.E}, 1, v{p.E}', f'v_max_u32 v{p.E}, 1, v{p.E}', 's_mov_b64 exec, 1',
        f'buffer_store_dword v{p.E}, off, {SWS}, 0 sc1', f'buffer_store_dword v{p.E}, off, {SDBG}, 0 sc1', 's_mov_b64 exec, -1', 's_nop 1', f's_branch EPOCHR_{prog}'])
    slow_blocks.append(eb.text())
    xa, xb = x_reads(0, 0, t), x_reads(1, 1, t + 16)
    o += xa[:4] + xb[:4] + xa[4:] + dma_item('X', 4, 6, prog) + xb[4:] + dma_item('X', 5, 7, prog)
    o += x_stats(t) + x_stats(t + 16)
    o += ['WAIT X3 xr', 's_barrier'] + stamp('b0')
    for n in range(NWF - 1): o += w_reads(n)
    o += dma_item('W', 2, 0, prog) + dma_item('X', 6, 1, prog)
    sg.extend(o)

    pre = {n: [] for n in range(97)}; gap = {n: [[], []] for n in range(96)}
    PD = NWF - 1
    bar = lambda c: 8 * c - PD
    for c, (q, s0, s1_) in enumerate(((2, 3, 4), (4, 6, 7), (6, 1, 3))):
        xa, xb = x_reads(q, s0, t), x_reads(q + 1, s1_, t + 16)
        rd = xa[:4] + xb[:4] + xa[4:] + xb[4:]
        n0 = max(0, bar(c)); slots = [(n, g) for n in range(n0, bar(c + 1) - 1) for g in range(2)]
        for i, ins in enumerate(rd):
            n, g = slots[i * len(slots) // len(rd)]; gap[n][g].append(ins)
        pre[bar(c + 1)] += x_stats(t) + x_stats(t + 16)
    after_bar = {1: [('X', 7, 3), ('W', 3, 4)], 2: [('W', 4, 2), ('W', 5, 6), ('W', 6, 7)], 3: [('W', 7, 5), ('W', 8, 1), ('W', 9, 3)], 4: [('W', 10, 0)], 5: [('W', 11, 4)],
                 6: [('S', 0, 2)], 7: [('S', 1, 6)], 8: [('S', 2, 7)], 9: [('S', 3, 5)], 10: [('S', 6, 1)], 11: [('S', 9, 3)], 12: [('S', 12, 0)]}
    for c in range(1, 13):
        n = bar(c)
        wt = f'W{c} csadd xr' + (f' X{2*c+3}' if c < 3 else '')
        pre[n] += [f'WAIT {wt}', 's_barrier'] + stamp(f'b{c}')
        for k, it in enumerate(after_bar[c]): gap[n + k][0] += dma_item(*it, prog)
    for i in range(4):
        gap[bar(1) + 4 + i][1] += ([f'v_lshrrev_b32 v{t+40}, 3, v{p.L}', f'v_mul_u32_u24 v{t+40}, 3072, v{t+40}'] if i == 0 else [f'v_add_u32 v{t+40}, 24576, v{t+40}']) + \
                                  [f'v_add_u32 v{p.offS+i}, v{t+40}, v{p.offX+i}']
    for n in range(0, 96, 2): gap[n - 1 if n & 31 == 30 else n][0].insert(0, cs_mfma(n))
    for pc in range(3): gap[32 * pc + 31][0].append(T(f'ds_add_f32 v{p.aCSa}, v{p.csacc} offset:{256*pc}', 'csadd'))
    STG = env('STG', 1)
    gap[PFA][1] += [f'buffer_load_dword v{p.E}, off, {SDBG}, 0 sc1']
    if STG == 0: gap[PFA][1] += pf_wsp(0); pfB = pf_wsp(1)
    else:
        pfB = pf_wsp2(1) if prog == 'A' else []
        if prog == 'A': gap[PFA][1] += pf_wsp2(0)
        elif prog == 'B': gap[PFA][1] += pf_wsp2()
    def sc(n, i, slot, nxt):
        gap[n][1] += consume_S(i, slot)
        if nxt is not None: gap[n + 2][0] += [f'WAIT sr{i}'] + dma_item('S', nxt, slot, prog)
    sc(70, 0, 2, 4); sc(71, 1, 6, 5); sc(79, 2, 7, 7); sc(80, 3, 5, 8); sc(87, 4, 2, 10); sc(88, 5, 6, 11)
    def csadd(pc): return ['WAIT csadd', 's_barrier']

    def steps(n0, n1):
        o = []
        for n in range(n0, n1):
            o += pre[n]
            o.append(main_mfma(n, 0, atype[n >> 5]))
            if n + PD < 96: o += w_reads(n + PD)
            o += gap[n][0]
            o.append(main_mfma(n, 1, atype[n >> 5]))
            o += gap[n][1]
        return o
    def run(n0, n1, fill=(), budget=6.0, start=0):
        m, rest = merge(steps(n0, n1), list(fill), budget, start)
        drop = os.environ.get('DROP', '').split(',')
        if n1 <= 32: m = [x for x in m if x.kind not in drop]
        sg.extend(m); sg.extend(rest)

    run(0, 22)
    run(22, 32, xstat_finalize())
    sg.extend(csadd(0) + stamp('p0end'))
    tg = Seg(); tg.extend([f'SLOW_TG{prog}:', f's_mov_b32 s{sCnt}, {SPIN}', f'SLOWL_TG{prog}:', f'buffer_load_dword v{p.E}, off, {SDBG}, 0 sc1', 's_waitcnt vmcnt(0)',
        f'v_readfirstlane_b32 s{sTag}, v{p.E}', f's_cmp_lg_u32 s{sTag}, 0', f's_cbranch_scc1 RET_TG{prog}', f's_sub_u32 s{sCnt}, s{sCnt}, 1', f's_cmp_lg_u32 s{sCnt}, 0',
        f's_cbranch_scc1 SLOWL_TG{prog}', f's_branch RET_TG{prog}'])
    slow_blocks.append(tg.text())
    gettag = [f'v_readfirstlane_b32 s{sTag}, v{p.E}', f's_cmp_eq_u32 s{sTag}, 0', f's_cbranch_scc1 SLOW_TG{prog}', f'RET_TG{prog}:', f's_mov_b32 s{sTag2}, s{sTag}']
    def dbase(mul, colshift, base):
        return [f's_andn2_b32 s{sD}, s{sST}, 1', f's_mul_i32 s{sD}, s{sD}, {mul}', f's_lshl_b32 s{sT1}, s{colshift}, 5', f's_add_u32 s{sD}, s{sD}, s{sT1}',
                f's_lshl_b32 s{sT1}, s{sTT}, 11', f's_add_u32 s{sD}, s{sD}, s{sT1}', f's_add_u32 s{sD}, s{sD}, {base}', f's_add_u32 s{sD2}, s{sD}, {mul}']
    bump = [f's_add_u32 s{sD}, s{sD}, 4096', f's_add_u32 s{sD2}, s{sD2}, 4096']
    if hasz2:
        sg.extend(z2_gelu_block(prog, gettag) + pfB + pf_wo() + stamp('gelu'))
        run(32, POLL1)
        sg.extend(stats_poll_loads())
        run(POLL1, POLL2)
        sg.extend(stats_check(prog) + stamp('stchk'))
        run(POLL2, POLL2 + 3, z2_stats(), 7.0)
        sg.extend(['WAIT z2s', 's_barrier'])
        run(POLL2 + 3, 64, z2_normalize(), 7.0)
        sg.extend(csadd(1))
        f1post = ['WAIT stZ'] + post_flag(p.E, [f's_lshr_b32 s{sT1}, s{sWb[0]}, 6', f's_add_u32 s{sT1}, s{sT1}, s{sTT}', f's_lshl_b32 s{sT1}, s{sT1}, 7', f's_lshr_b32 s{sT2}, s{sST}, 1',
                  f's_lshl_b32 s{sT2}, s{sT2}, 2', f's_add_u32 s{sT1}, s{sT1}, s{sT2}', f's_add_u32 s{sT1}, s{sT1}, {WS_F1 - 20*128}'], sT1) + stamp('f1post')
        if prog == 'A': fl = epi_a(1, 'scalar', True, p.pk)
        else: sg.extend(dbase(32768, sWb[1], WS_PQ)); fl = epi_b(1, 'scalar', True)
        m, rest = merge(steps(64, F1P), fl, 6.0); sg.extend(m); sg.extend(f1post)
        run(F1P, 96, rest, 6.5)
    else:
        sg.extend(xstat_fetch() + dbase(43 * 1024, sWb[0], WS_Z1))
        run(32, 64, [pfB, pf_wo()] + epi_b(0, 'scalar', False) + [gettag], 7.5)
        sg.extend(csadd(1) + bump)
        run(64, 96, epi_b(1, 'scalar', False), 7.5)
    sg.extend(csadd(2) + stamp('mfmaend'))
    sg.extend(dma_item('S', 13, 4, prog) + consume_S(6, 1) + consume_S(7, 7) + ['WAIT sr6'] + dma_item('S', 14, 1, prog) + ['WAIT sr7'] + dma_item('S', 15, 7, prog) + consume_S(8, 5))
    late = consume_S(9, 3) + consume_S(10, 2) + consume_S(11, 6)
    last = consume_S(12, 0) + consume_S(13, 4) + consume_S(14, 1) + consume_S(15, 7)
    if prog == 'A':
        vp = acc(0, 0); m = [acc(0, 1), t]
        sg.extend(epi_a(2, 'pk', False, vp))
        o = [f's_mov_b32 s{sMaskLo}, 0xffff', f's_mov_b32 s{sMaskLo+1}, 0xffff']; D = [acc(1, 0), acc(1, 1)]
        for rt in range(2):
            for r in range(8):
                o.append(f'v_cndmask_b32 v{m[rt]+r}, v{p.ones}, v{vp+8*rt+r}, {S(sMaskLo,2)}')
                o.append(f'v_cndmask_b32 v{m[rt]+8+r}, v{vp+8*rt+r}, v{p.ones}, {S(sMaskLo,2)}')
            for qd in range(2):
                for var in range(2):
                    d = V(D[var], 16)
                    o.append(f'v_mfma_f32_32x32x16_bf16 {d}, {V(p.pk+8*rt+4*qd,4)}, {V(m[rt]+8*var+4*qd,4)}, {"0" if rt + qd == 0 else d}')
        ad = t + 20
        o += [f'v_add_u32 v{ad}, s{sW4K}, v{p.L16}', f's_mul_i32 s{sT0}, s{sMH}, 2048', f's_lshl_b32 s{sT1}, s{sTT}, 12', f's_add_u32 s{sT0}, s{sT0}, s{sT1}',
              f'v_add_u32 v{ad+1}, s{sT0}, v{p.L16}'] + late + ['WAIT sr9']
        for var in range(2):
            for k in range(2): o.append(T(f'ds_write_b128 v{ad}, {V(D[var]+8*var+4*k,4)} offset:{3*SLOT+var*2048+k*1024}', 'kvw'))
        rb = acc(0, 0); tg_ = acc(2, 0)
        for r in range(8): o.append(f'v_mov_b32 v{tg_+2*r+1}, s{sTag}')
        o += [f's_lshl_b32 s{sT0}, s{sRB}, 17', f's_lshl_b32 s{sT1}, s{sG}, 14', f's_add_u32 s{sT0}, s{sT0}, s{sT1}', f's_lshl_b32 s{sT1}, s{sTT}, 13',
              f's_add_u32 s{sT0}, s{sT0}, s{sT1}', f's_lshl_b32 s{sT1}, s{sMH}, 12', f's_add_u32 s{sT0}, s{sT0}, s{sT1}', f's_add_u32 s{sT0}, s{sT0}, {WS_KVP}', 'WAIT kvw', 's_barrier']
        for w2 in range(2):
            for k in range(2): o.append(f'ds_read_b128 {V(rb+8*w2+4*k,4)}, v{ad+1} offset:{3*SLOT+w2*8192+k*1024}')
        for r in range(8): o.append(f'v_add_f32 v{tg_+2*r}, v{rb+r}, v{rb+8+r}')
        for k in range(4): o.append(T(f'buffer_store_dwordx4 {V(tg_+4*k,4)}, v{p.L16}, {SWS}, s{sT0} offen offset:{k*1024} sc1', 'st2'))
        sg.extend(o)
    elif prog == 'B':
        sg.extend(bump + epi_b(2, 'pk', True) + late + ['s_barrier'])
    else:
        sg.extend(bump + [f's_cmp_ge_u32 s{sG}, 14', f's_cselect_b32 s{sD}, {OOB}, s{sD}', f's_cselect_b32 s{sD2}, {OOB}, s{sD2}'] + epi_b(2, 'pk', False) + late + ['s_barrier'])
    sg.extend(last)
    sg.extend(f1_sload() + ['s_waitcnt vmcnt(0) lgkmcnt(0)'])
    sg.extend(post_flag(p.E, [f's_lshr_b32 s{sT1}, s{sST}, 1', f's_lshl_b32 s{sT1}, s{sT1}, 7', f's_lshl_b32 s{sT2}, s{sG}, 3', f's_add_u32 s{sT1}, s{sT1}, s{sT2}',
                              f's_lshl_b32 s{sT2}, s{sTT}, 2', f's_add_u32 s{sT1}, s{sT1}, s{sT2}', f's_add_u32 s{sT1}, s{sT1}, {WS_F2}'], sT1) + stamp('p1end'))
    return sg
```

```python
from common import *
from gen2_p1 import p, sMH, sTT, rot, F1L
class Q: pass
q = Q()
al = Alloc(5)
q.L, q.L16, q.E = p.L, p.L16, p.E
q.zoff = al(1); q.b = al(1); q.aRW = al(3); q.aRR = al(1); q.poll = al(1); q.pa = al(1); q.offD = al(4)
q.z1 = al(12, 4); q.red = al(24, 4); q.g0 = al(8, 4); q.acc = al(64, 4); q.stg = al(128, 4)
assert al.n <= 256, al.n
NS = env('NS', 16)
sZb, sHo, sZ1o = sA, sB_, sC
sHb = [64, 65, 66, 67, 68, 69]; sHz = 77; sOb = [78, 79, 80, 81]; sXO = 82; sTb16 = 97
def flag_cmp(): return [f'v_cmp_ne_u32 vcc, s{sTag}, v{q.poll}']
def poll_load(): return [f'buffer_load_dword v{q.poll}, v{q.pa}, {SWS}, 0 offen sc1']
def dma_d(kind, g4):
    if kind == 'wo':   lds = f's_lshl_b32 s{sT1}, s{sW}, 14'; base = g4 * 4096; rs = SWO; rowb = f's_lshl_b32 s{sT0}, s{sW}, 17'; add = g4 * 32768
    elif kind == 'wt': lds = f's_mul_i32 s{sT1}, s{sW}, {144*128}'; base = L_WOUT + g4 * 4096; rs = SWOUT; rowb = f's_mul_i32 s{sT0}, s{sW}, {144*1024}'; add = g4 * 32768
    else:              lds = f's_lshl_b32 s{sT1}, s{sW}, 12'; base = L_RED; rs = SWOUT; rowb = f's_lshl_b32 s{sT0}, s{sW}, 15'; add = 576 * 1024
    n = 2 if (kind == 'wt' and g4 == 4) else 4
    o = [lds, f's_add_u32 m0, s{sT1}, {base}', rowb, f's_add_u32 s{sT0}, s{sT0}, s{sD}', f's_add_u32 s{sT0}, s{sT0}, {add}']
    for i in range(n): o.append(T(f'buffer_load_dwordx4 v{q.offD+i}, {rs}, s{sT0} offen offset:{i*1024} lds', kind))
    return o
def zload(n):
    ft, ks = n >> 5, n & 31; o = []
    if ks & 3 == 0: o += rot(sT2, sR2, ks >> 2, 7, 4096, sZb, ft*131072)
    o.append(f'buffer_load_dwordx4 {V(q.stg+4*(n % NS),4)}, v{q.zoff}, {SWS}, s{sT2} offen offset:{(ks & 3)*1024} sc1')
    return o
def zmfma(n, b):
    ft, ks = n >> 5, n & 31
    d = V(q.acc + 32 * (ft & 1) + 16 * b, 16)
    return f'v_mfma_f32_32x32x16_bf16 {d}, {V(q.stg+4*(n % NS),4)}, {A(128*b+4*ks,4)}, {"0" if ks == 0 else d}'
def red_write(ft):
    ac = q.acc + 32 * (ft & 1)
    return [T(f'ds_write_b128 v{q.aRW+m-1}, {V(ac+8*m+4*k,4)} offset:{k*1024}', 'rw') for m in range(1, 4) for k in range(2)]
def red_read(): return [T(f'ds_read_b128 {V(q.red+4*i,4)}, v{q.aRR} offset:{i*1024}', 'rr') for i in range(6)]
def g_sum(ft, dst, mode):
    ac = q.acc + 32 * (ft & 1); r = q.red; o = []
    if mode == 'pk':
        o += [pk('v_pk_add_f32', dst+i, [ac+i, bc(q.b)]) for i in range(0, 8, 2)] + [pk('v_pk_add_f32', r+i, [r+i, r+8+i]) for i in range(0, 8, 2)]
        o += [pk('v_pk_add_f32', dst+i, [dst+i, r+16+i]) for i in range(0, 8, 2)] + [pk('v_pk_add_f32', dst+i, [dst+i, r+i]) for i in range(0, 8, 2)]
    else:
        o += [f'v_add_f32 v{dst+i}, v{ac+i}, v{q.b}' for i in range(8)] + [f'v_add_f32 v{r+i}, v{r+i}, v{r+8+i}' for i in range(8)]
        o += [f'v_add_f32 v{dst+i}, v{dst+i}, v{r+16+i}' for i in range(8)] + [f'v_add_f32 v{dst+i}, v{dst+i}, v{r+i}' for i in range(8)]
    return o
def z1_unpack(ft, u): return [x for i in range(4) for x in (f'v_lshlrev_b32 v{u+2*i}, 16, v{q.z1+4*ft+i}', f'v_and_b32 v{u+2*i+1}, 0xffff0000, v{q.z1+4*ft+i}')]
def h_fin(ft, g, u, mode):
    d = q.z1 + 4 * ft
    o = [pk('v_pk_mul_f32', g+i, [g+i, u+i]) for i in range(0, 8, 2)] if mode == 'pk' else [f'v_mul_f32 v{g+i}, v{g+i}, v{u+i}' for i in range(8)]
    o += pack8(d, g)
    if ft == 2: o.append(f's_add_u32 s{sHo}, s{sHo}, 4096')
    o.append(T(f'buffer_store_dwordx4 {V(d,4)}, v{q.L16}, {SWS}, s{sHo} offen offset:{(ft & 1)*2048} sc1', 'stH'))
    return o
def z1_loads(n):
    o = []
    for ft in range(n):
        if ft == 2: o.append(f's_add_u32 s{sZ1o}, s{sZ1o}, 4096')
        o.append(f'buffer_load_dwordx4 {V(q.z1+4*ft,4)}, v{q.L16}, {SWS}, s{sZ1o} offen offset:{(ft & 1)*2048} sc1')
    return o
F2LD = [f's_buffer_load_dwordx16 s[48:63], {SWS}, s{sF[0]}', f's_buffer_load_dwordx16 s[24:39], {SWS}, s{sF[0]} offset:64']
F4LD = [f's_buffer_load_dwordx4 s[24:27], {SWS}, s{sF[1]}']
F5LD = [f's_buffer_load_dwordx16 s[48:63], {SWS}, s{sF[2]}']
def f2_check(name): return sflag_check(name, list(range(48, 64, 2)) + list(range(24, 40, 2)), F2LD)
def f1_check(name): return sflag_check(name, list(range(48, 64, 2)) + list(range(24, 32, 2)), F1L) + [f's_mov_b32 s{sT0}, s{sA}']
def phase2_setup():
    o = []; a = o.append; t = q.red; L = q.L
    a(f's_lshl_b32 s{sZb}, s{sT0}, 17'); a(f's_lshl_b32 s{sT1}, s{sW}, 15'); a(f's_add_u32 s{sZb}, s{sZb}, s{sT1}'); a(f's_add_u32 s{sZb}, s{sZb}, {WS_Z2T}')
    a(f's_lshl_b32 s{sT2}, s{sTT}, 8'); a(f'v_xor_b32 v{q.zoff}, s{sT2}, v{q.L16}')
    a(f's_lshl_b32 s{sT0}, s{sT0}, 1'); a(f's_add_u32 s{sT0}, s{sT0}, s{sTT}')
    a(f's_lshl_b32 s{sT1}, s{sTB}, 1'); a(f's_add_u32 s{sT1}, s{sT1}, s{sMH}')
    a(f's_mul_i32 s{sCnt}, s{sT1}, 43'); a(f's_add_u32 s{sT2}, s{sCnt}, s{sT0}'); a(f's_lshl_b32 s{sT2}, s{sT2}, 10')
    a(f's_add_u32 s{sHo}, s{sT2}, {WS_H - 1024}'); a(f's_add_u32 s{sZ1o}, s{sT2}, {WS_Z1 - 1024}')
    a(f's_cmp_eq_u32 s{sT0}, 0'); a(f's_cselect_b32 s{sHo}, {OOB}, s{sHo}'); a(f's_cselect_b32 s{sZ1o}, {OOB}, s{sZ1o}')
    a(f's_lshl_b32 s{sT2}, s{sT1}, 6'); a(f'v_and_b32 v{t}, 31, v{L}'); a(f'v_lshlrev_b32 v{t}, 1, v{t}')
    a(f'buffer_load_ushort v{q.b}, v{t}, {SB}, s{sT2} offen')
    a(f's_mul_i32 s{sT2}, s{sTT}, 21'); a(f's_add_u32 s{sCnt}, s{sCnt}, s{sT2}'); a(f's_lshl_b32 s{sCnt}, s{sCnt}, 10'); a(f's_add_u32 s{sHb[0]}, s{sCnt}, {WS_H}')
    for k in range(1, 6): a(f's_add_u32 s{sHb[k]}, s{sHb[0]}, {4096*k}')
    a(f's_cmp_eq_u32 s{sTT}, 1'); a(f's_cselect_b32 s{sHz}, {OOB}, s{sHb[0]}')
    a(f's_lshl_b32 s{sT1}, s{sT1}, 15'); a(f's_lshl_b32 s{sT2}, s{sTT}, 14'); a(f's_add_u32 s{sT1}, s{sT1}, s{sT2}'); a(f's_add_u32 s{sOb[0]}, s{sT1}, {WS_O}')
    for k in range(1, 4): a(f's_add_u32 s{sOb[k]}, s{sOb[0]}, {4096*k}')
    a(f's_lshl_b32 s{sD}, s{sJ}, 7'); a(f's_lshl_b32 s{sTb16}, s{sTB}, 16'); a(f's_add_u32 s{sXO}, s{sTb16}, s{sD}')
    a(f's_lshl_b32 s{sT0}, s{sTB}, 7'); a(f's_add_u32 s{sF[0]}, s{sT0}, {WS_F2}'); a(f's_add_u32 s{sF[1]}, s{sT0}, {WS_F4}')
    a(f's_lshl_b32 s{sT1}, s{sMH}, 6'); a(f's_add_u32 s{sT0}, s{sT0}, s{sT1}'); a(f's_add_u32 s{sF[2]}, s{sT0}, {WS_F5}')
    for m in range(1, 4):
        a(f's_xor_b32 s{sT0}, s{sW}, {m}'); a(f's_mul_i32 s{sT0}, s{sT0}, 6144'); a(f's_add_u32 s{sT0}, s{sT0}, {L_RED + (m-1)*2048}')
        a(f'v_add_u32 v{q.aRW+m-1}, s{sT0}, v{q.L16}')
    a(f's_mul_i32 s{sT0}, s{sW}, 6144'); a(f's_add_u32 s{sT0}, s{sT0}, {L_RED}'); a(f'v_add_u32 v{q.aRR}, s{sT0}, v{q.L16}')
    a(f'v_lshrrev_b32 v{t}, 3, v{L}'); a(f'v_bfe_u32 v{t+1}, v{L}, 4, 1'); a(f'v_lshlrev_b32 v{t+1}, 2, v{t+1}'); a(f'v_and_b32 v{t+2}, 7, v{L}')
    a(f'v_xor_b32 v{t+1}, v{t+1}, v{t+2}'); a(f'v_lshlrev_b32 v{t+1}, 4, v{t+1}'); a(f'v_lshl_add_u32 v{q.offD}, v{t}, 10, v{t+1}')
    for i in range(1, 4): a(f'v_add_u32 v{q.offD+i}, {i*7168}, v{q.offD}')
    return o

class R: pass
r3 = R()
r3.trS, r3.trY, r3.aW, r3.aR, r3.oo, r3.m = q.z1, q.z1 + 2, q.z1 + 4, q.z1 + 5, q.z1 + 7, 17
r3.wf = q.red; r3.x = q.g0; r3.acc = q.acc; r3.of = q.stg + 64; r3.t = q.acc + 56
assert NS <= 16
def hfr(i): return q.stg + 4 * i if i < 16 else q.acc + 32 + 4 * (i - 16)
def o_load(i): return f'buffer_load_dwordx4 {V(r3.of+4*i,4)}, v{q.L16}, {SWS}, s{sOb[i >> 2]} offen offset:{(i & 3)*1024} sc1'
def h_load(i): return f'buffer_load_dwordx4 {V(hfr(i),4)}, v{q.L16}, {SWS}, s{sHz if i == 0 else sHb[i >> 2]} offen offset:{(i & 3)*1024} sc1'
def sent_ops(regs, m):
    d = [r + k for r in regs for k in range(4)]
    o = [f'v_max3_u32 v{m}, v{d[0]}, v{d[1]}, v{d[2]}', f'v_max_u32 v{m+1}, v{d[3]}, v{d[4]}']; d = d[5:]; k = 0
    while len(d) >= 2:
        o.append(f'v_max3_u32 v{m+k}, v{m+k}, v{d[0]}, v{d[1]}'); d = d[2:]; k ^= 1
    o.append(f'v_max3_u32 v{m}, v{m}, v{m+1}, v{d[0]}' if d else f'v_max_u32 v{m}, v{m}, v{m+1}')
    return o
def sent_check(name, loads, regs, m, early=False):
    ops = sent_ops(regs, m); cmp_ = [f'v_cmp_eq_u32 vcc, -1, v{m}']
    full = poll_check(name, loads, ops + cmp_)
    return (ops, full[len(ops):]) if early else full

def f5_post():
    return ['WAIT stH'] + post_flag(q.E, [f's_lshl_b32 s{sT0}, s{sJ}, 3', f's_lshl_b32 s{sT1}, s{sTT}, 2', f's_add_u32 s{sT0}, s{sT0}, s{sT1}', f's_add_u32 s{sT0}, s{sT0}, s{sF[2]}'], sT0)
def gemm2_main(sg):
    st = phase2_setup()
    sg.extend(f1_check('F1') + stamp('f1ok') + st[:6])
    o = []
    t = q.red + 8
    for n in range(NS):
        o += zload(n)
        if n == 3 and env('ZPF', 1):
            o += [f'v_and_b32 v{t}, 31, v{q.L}', f'v_lshlrev_b32 v{t}, 7, v{t}', f'v_lshrrev_b32 v{t+1}, 5, v{q.L}', f'v_lshl_add_u32 v{t}, v{t+1}, 17, v{t}',
                  f's_add_u32 s{sT1}, s{sT2}, 131072', PF(f'buffer_load_dword v{p.dum}, v{t}, {SWS}, s{sT1} offen sc1')]
        if n == 3: o += st[6:]
    sg.extend(o)
    gap = {n: [] for n in range(96)}
    F2I = env('F2I', 16)
    gap[F2I] += sl(F2LD)
    gap[F2I + 12] += f2_check('F2') + z1_loads(3) + [f'v_lshlrev_b32 v{q.b}, 16, v{q.b}']
    for ft in range(2):
        n = 32 * (ft + 1)
        if ft: gap[n - 2] += ['s_barrier']
        gap[n + 1] += red_write(ft)
        gap[n + 4] += ['WAIT rw', 's_barrier'] + red_read()
    gap[92] += ['s_barrier']
    for k in range(4): gap[96 - NS + k * NS // 4] += dma_d('wo', k)
    def steps(n0, n1):
        o = []
        for n in range(n0, n1):
            o += stamp(f'g{n}') + [zmfma(n, 0), zmfma(n, 1)]
            if n + NS < 96: o += zload(n + NS)
            o += gap[n]
        return o
    def run(n0, n1, fill=(), b=4.0):
        m, rest = merge(steps(n0, n1), list(fill), b); sg.extend(m); sg.extend(rest)
    g1 = q.acc + 32; u = q.red + 8; HA = F2I + 12 + NS + 2
    run(0, 38); run(38, max(HA, 50), g_sum(0, q.g0, 'scalar')); run(max(HA, 50), 62, z1_unpack(0, u) + h_fin(0, q.g0, u, 'scalar')); run(62, 70)
    run(70, 96, g_sum(1, g1, 'scalar') + z1_unpack(1, u) + h_fin(1, g1, u, 'scalar') + z1_unpack(2, q.g0))
    sg.extend(stamp('g96') + red_write(2) + ['WAIT rw', 's_barrier'] + red_read() + g_sum(2, q.acc, 'pk') + h_fin(2, q.acc, q.g0, 'pk') + stamp('hst') + sl(F4LD))
    sg.extend(dma_d('wt', 0) + dma_d('wt', 1) + f5_post() + stamp('hflag') + sflag_check('F4', [24, 26], F4LD) + stamp('f4ok') + [o_load(i) for i in range(16)])
    for k in range(2, 5): sg.extend(dma_d('wt', k))

def gemm2_light(sg):
    g = q.stg + 64; t = q.red; L = q.L
    def tagchk(base, n, m):
        c = [f'v_xor_b32 v{base+2*k+1}, s{sTag}, v{base+2*k+1}' for k in range(n)]
        c += [f'v_or3_b32 v{m}, v{base+1}, v{base+3}, v{base+5}', f'v_or_b32 v{m+1}, v{base+7}, v{base+9}']; k = 5; j = 0
        while k + 1 < n: c.append(f'v_or3_b32 v{m+j}, v{m+j}, v{base+2*k+1}, v{base+2*k+3}'); k += 2; j ^= 1
        c += [f'v_or3_b32 v{m}, v{m}, v{m+1}, v{base+2*k+1}' if k < n else f'v_or_b32 v{m}, v{m}, v{m+1}', f'v_cmp_ne_u32 vcc, 0, v{m}']
        return c
    o = f1_check('F1L') + stamp('f1ok') + phase2_setup() + ['s_barrier']
    for n in range(NS): o += zload(n)
    o += [f'v_lshlrev_b32 v{q.b}, 16, v{q.b}']
    dd = [dma_d('wo', k) for k in range(4)] + [dma_d('wt', k) for k in range(5)]
    for n in range(32):
        o += [zmfma(n, 0), zmfma(n, 1)]
        if n + NS < 32: o += zload(n + NS)
        elif (n & 1) == 0 and dd: o += dd.pop(0)
    for d in dd: o += d
    o += stamp('g96')
    sK = [98, 99, 100, 101]
    kvp = [f'buffer_load_dwordx4 {V(g+16*i+4*k,4)}, v{q.L16}, {SWS}, s{sK[i]} offen offset:{k*1024} sc1' for i in range(4) for k in range(4)]
    o += [f's_lshl_b32 s{sT0}, s{sW}, 19', f's_lshl_b32 s{sT1}, s{sTB}, 12', f's_add_u32 s{sT0}, s{sT0}, s{sT1}', f's_add_u32 s{sK[0]}, s{sT0}, {WS_KVP}']
    o += [f's_add_u32 s{sK[i]}, s{sK[0]}, {i*131072}' for i in range(1, 4)] + kvp
    o += red_write(0) + ['WAIT rw', 's_barrier'] + red_read() + g_sum(0, q.acc, 'pk')
    x = q.acc + 32
    o += [f's_lshl_b32 s{sT0}, s{sW}, 11', f's_add_u32 s{sT0}, s{sT0}, {L_RED}', f'v_add_u32 v{t+20}, s{sT0}, v{q.L16}', f'v_add_u32 v{t+21}, {L_RED}, v{q.L16}', 's_barrier']
    o += poll_check('KVP', kvp, tagchk(g, 32, t + 16)) + stamp('kvpok') + sl(F2LD)
    for r in range(8): o += [f'v_add_f32 v{t+r}, v{g+2*r}, v{g+16+2*r}', f'v_add_f32 v{t+8+r}, v{g+32+2*r}, v{g+48+2*r}']
    o += [pk('v_pk_add_f32', t+r, [t+r, t+8+r]) for r in range(0, 8, 2)]
    o += [T(f'ds_write_b128 v{t+20}, {V(t+4*k,4)} offset:{k*1024}', 'kx') for k in range(2)] + ['WAIT kx', 's_barrier']
    o += [f'ds_read_b128 {V(x+4*i,4)}, v{t+21} offset:{i*1024}' for i in range(8)]
    o += [pk('v_pk_add_f32', x+r, [x+r, x+8+r]) for r in range(0, 8, 2)] + [pk('v_pk_add_f32', x+16+r, [x+16+r, x+24+r]) for r in range(0, 8, 2)]
    o += [pk('v_pk_add_f32', x+r, [x+r, x+16+r]) for r in range(0, 8, 2)]
    kf = t
    o += [f'v_cvt_pk_bf16_f32 v{kf+2*i}, v{x+2*i}, v{x+2*i+1}' for i in range(4)] + [f'v_mov_b32 v{kf+2*i+1}, s{sTag}' for i in range(4)]
    o += [f's_and_b32 s{sT1}, s{sTB}, 1', f's_lshl_b32 s{sT1}, s{sT1}, 8', f'v_xor_b32 v{kf+8}, s{sT1}, v{q.L16}', f's_lshl_b32 s{sT1}, s{sTB}, 11', f's_add_u32 s{sT1}, s{sT1}, {WS_KVF}',
          f's_cmp_eq_u32 s{sW}, 0', f's_cselect_b32 s{sT1}, s{sT1}, {OOB}']
    o += [f'buffer_store_dwordx4 {V(kf+4*k,4)}, v{kf+8}, {SWS}, s{sT1} offen offset:{k*1024} sc1' for k in range(2)] + stamp('kvfst')
    o += f2_check('F2L') + z1_loads(1)
    pq = q.stg; kv = q.stg + 64
    o += [f's_lshl_b32 s{sT0}, s{sW}, 13', f's_add_u32 s{sT0}, s{sT0}, s{sTb16}', f's_add_u32 s98, s{sT0}, {WS_PQ}', f's_add_u32 s100, s{sT0}, {WS_O}']
    for tt in range(2):
        for hh in range(8):
            if hh == 4 or (tt and hh == 0): o.append(f's_add_u32 s98, s98, {4096 if hh == 4 else 32768 - 4096}')
            o.append(f'buffer_load_dwordx4 {V(pq+32*tt+4*hh,4)}, v{q.L16}, {SWS}, s98 offen offset:{(hh & 3)*1024} sc1')
    o += [f's_lshl_b32 s{sT0}, s{sW}, 14', f's_add_u32 s{sT0}, s{sT0}, {WS_KVF}', f'v_add_u32 v{q.pa}, s{sT0}, v{q.L16}', f's_movk_i32 s98, 4096', f's_movk_i32 s99, 8192', f's_movk_i32 s101, 12288']
    so = ['0', 's98', 's99', 's101']
    kvl = [f'buffer_load_dwordx4 {V(kv+4*i,4)}, v{q.pa}, {SWS}, {so[i >> 2]} offen offset:{(i & 3)*1024} sc1' for i in range(16)]
    o += z1_unpack(0, q.g0) + h_fin(0, q.acc, q.g0, 'pk') + stamp('hst') + kvl
    o += f5_post() + poll_check('KVF', kvl, tagchk(kv, 32, t + 16)) + stamp('kvfok')
    op = q.acc + 32
    for hh in range(8): o += [f'v_mov_b32 v{op+4*hh+i}, v{kv+8*hh+2*i}' for i in range(4)]
    D = [kv, kv + 16, kv + 32, kv + 48]
    def omf(k): return f'v_mfma_f32_32x32x16_bf16 {V(D[k & 3],16)}, {V(op+4*(k & 7),4)}, {V(pq+4*k,4)}, 0'
    def ofin(k):
        d = D[k & 3]; r = [f'v_add_f32 v{d+8}, s{sEps2}, v{d+8}', f'v_rcp_f32 v{d+8}, v{d+8}']
        r += [f'v_mul_f32 v{d+i}, v{d+i}, v{d+8}' for i in range(8)] + pack8(pq + 4 * k, d)
        if k == 4 or k == 12: r.append('s_add_u32 s100, s100, 4096')
        if k == 8: r.append(f's_add_u32 s100, s100, {32768 - 4096}')
        r.append(f'buffer_store_dwordx4 {V(pq+4*k,4)}, v{q.L16}, {SWS}, s100 offen offset:{(k & 3)*1024} sc1')
        return r
    o += [omf(0), omf(1), omf(2)]
    for k in range(16):
        if k + 3 < 16: o.append(omf(k + 3))
        o += ofin(k)
    o += stamp('ost') + ['s_waitcnt vmcnt(0)'] + post_flag(q.E, [f's_lshl_b32 s{sT0}, s{sW}, 2', f's_add_u32 s{sT0}, s{sT0}, s{sF[1]}'], sT0) + ['s_barrier'] + [o_load(i) for i in range(16)]
    sg.extend(o)

def phase3(sg):
    t = r3.t; L = q.L; o = []; a = o.append
    o += ['WAIT wo', 's_barrier'] + dma_d('wl', 0)
    a(f's_lshl_b32 s{sT1}, s{sW}, 3'); a(f'v_lshrrev_b32 v{t+5}, 3, v{L}'); a(f'v_add_u32 v{t+5}, s{sT1}, v{t+5}'); a(f'v_and_b32 v{t+6}, 7, v{L}'); a(f'v_lshlrev_b32 v{t+7}, 4, v{t+6}'); a(f'v_lshl_add_u32 v{r3.oo}, v{t+5}, 10, v{t+7}')
    a(f'buffer_load_dwordx4 {V(r3.x,4)}, v{r3.oo}, {SX}, s{sXO} offen'); a(f's_add_u32 s{sA}, s{sXO}, 0x8000')
    a(f'buffer_load_dwordx4 {V(r3.x+4,4)}, v{r3.oo}, {SX}, s{sA} offen')
    hl = [h_load(i) for i in range(22)]
    a(f'v_lshlrev_b32 v{t+6}, 1, v{t+6}'); a(f'v_and_b32 v{t+7}, 15, v{t+5}'); a(f'v_xor_b32 v{t+6}, v{t+6}, v{t+7}'); a(f'v_lshlrev_b32 v{t+6}, 4, v{t+6}')
    a(f'v_lshl_add_u32 v{r3.aR}, v{t+5}, 8, v{t+6}'); a(f'v_xor_b32 v{r3.aR+1}, 16, v{r3.aR}')
    h, r_, c_ = t, t + 1, t + 2
    a(f'v_lshrrev_b32 v{h}, 5, v{L}'); a(f'v_bfe_u32 v{r_}, v{L}, 2, 2'); a(f'v_and_b32 v{c_}, 3, v{L}'); a(f'v_bfe_u32 v{t+3}, v{L}, 4, 1')
    a(f'v_lshlrev_b32 v{c_}, 3, v{c_}'); a(f'v_lshl_add_u32 v{c_}, v{t+3}, 5, v{c_}')
    a(f'v_lshl_add_u32 v{t+4}, v{h}, 2, v{r_}'); a(f'v_lshl_add_u32 v{t+4}, v{t+4}, 7, v{c_}')
    a(f'v_bfe_u32 v{t+5}, v{L}, 3, 1'); a(f'v_lshl_add_u32 v{t+4}, v{t+5}, 6, v{t+4}')
    a(f's_lshl_b32 s{sT1}, s{sTT}, 15'); a(f'v_add_u32 v{r3.trS}, s{sT1}, v{t+4}'); a(f'v_xor_b32 v{r3.trS+1}, 64, v{r3.trS}')
    a(f's_mul_i32 s{sT1}, s{sTT}, {21*2048}'); a(f's_add_u32 s{sT1}, s{sT1}, {L_WOUT}'); a(f'v_add_u32 v{r3.trY}, s{sT1}, v{t+4}'); a(f'v_xor_b32 v{r3.trY+1}, 64, v{r3.trY}')
    a(f'v_and_b32 v{t+5}, 15, v{L}'); a(f'v_xor_b32 v{t+5}, v{t+5}, v{h}'); a(f'v_lshlrev_b32 v{t+5}, 4, v{t+5}')
    a(f'v_and_b32 v{t+6}, 31, v{L}'); a(f'v_lshl_add_u32 v{t+5}, v{t+6}, 8, v{t+5}')
    a(f's_lshl_b32 s{sT1}, s{sTT}, 14'); a(f's_lshl_b32 s{sT2}, s{sMH}, 13'); a(f's_add_u32 s{sT1}, s{sT1}, s{sT2}'); a(f'v_add_u32 v{r3.aW}, s{sT1}, v{t+5}')
    sg.extend(o)
    def rd(tr, i): return [f'ds_read_b64_tr_b16 {V(r3.wf+8*(i%3)+4*T_+2*k,2)}, v{tr+T_} offset:{i*2048+k*1024}' for T_ in range(2) for k in range(2)]
    def gemm(nk, tr, frag, ab, i0, i1, fill=()):
        o = rd(tr, 0) + rd(tr, 1) if i0 == 0 else []
        for i in range(i0, i1):
            for T_ in range(2):
                d = A(ab + 16 * T_, 16)
                o.append(f'v_mfma_f32_32x32x16_bf16 {d}, {V(r3.wf+8*(i%3)+4*T_,4)}, {V(frag(i),4)}, {"0" if i == 0 else d}')
                if i + 2 < nk: o += rd(tr, i + 2)[2*T_:2*T_+2]
        m, rest = merge(o, list(fill), 5.0)
        sg.extend(m); sg.extend(rest)
    xa = [f'v_xor_b32 v{t+4*dt+i}, {(8*dt+2*i)*16}, v{r3.aW}' for dt in range(2) for i in range(4)]
    def xw(base, ab): return [T(f'ds_write_b128 v{t+4*dt+i}, {A(ab+16*dt+4*i,4)} offset:{base}', 'xw') for dt in range(2) for i in range(4)]
    def xr(base, dst, tmp):
        o = []
        for e in range(2):
            for k in range(2):
                o.append(f'ds_read_b128 {V(dst+8*e+4*k,4)}, v{r3.aR+k} offset:{base+e*8192}')
                o.append(f'ds_read_b128 {V(tmp+8*e+4*k,4)}, v{r3.aR+k} offset:{base+16384+e*8192}')
        return o
    xx = q.acc
    xun = [x for i in range(8) for x in (f'v_lshlrev_b32 v{xx+2*i}, 16, v{r3.x+i}', f'v_and_b32 v{xx+2*i+1}, 0xffff0000, v{r3.x+i}')]
    HP = env('HP', 8)
    ofr = lambda i: r3.of + 4 * i
    sg.extend(sl(F5LD))
    gemm(16, r3.trS, ofr, 0, 0, HP, xa)
    sg.extend(stamp('s8') + sflag_check('F5', list(range(48, 64, 2)), F5LD) + stamp('f5ok') + hl)
    gemm(16, r3.trS, ofr, 0, HP, 16)
    sg.extend(stamp('sgemm') + ['WAIT wt wl', 's_barrier'] + xw(0, 0) + xun + stamp('H0'))
    gemm(22, r3.trY, hfr, 32, 0, 22)
    sg.extend(stamp('ygemm') + xw(32768, 32) + ['WAIT xw', 's_barrier'])
    y = q.stg + 64; u = q.stg + 80; sv = q.stg; s2 = q.stg + 16
    o = xr(32768, y, u) + xr(0, sv, s2); a = o.append
    for i in range(0, 16, 2): a(pk('v_pk_add_f32', y+i, [y+i, u+i]))
    for i in range(0, 16, 2): a(pk('v_pk_mul_f32', u+i, [y+i, S(sL2e2, 2)]))
    for i in range(16): a(f'v_exp_f32 v{u+i}, -v{u+i}')
    for i in range(0, 16, 2): a(pk('v_pk_add_f32', sv+i, [sv+i, s2+i]))
    for i in range(0, 16, 2): a(pk('v_pk_mul_f32', y+i, [y+i, sv+i]))
    for i in range(16): a(f'v_add_f32 v{u+i}, 1.0, v{u+i}')
    for e in range(2):
        for i in range(8 * e, 8 * e + 8): a(f'v_rcp_f32 v{u+i}, v{u+i}')
        for i in range(8 * e, 8 * e + 8, 2): a(pk('v_pk_fma_f32', y+i, [y+i, u+i, xx+i]))
        for i in range(4): a(f'v_cvt_pk_bf16_f32 v{u+8*e+i}, v{y+8*e+2*i}, v{y+8*e+2*i+1}')
        a(f'buffer_store_dwordx4 {V(u+8*e,4)}, v{r3.oo}, {SOUT}, s{sA if e else sXO} offen sc1')
    sg.extend(o)
    if STAMPS:
        o = ['s_waitcnt vmcnt(0)'] + stamp('end')
        o += [f's_lshl_b32 s{sT0}, s2, 2', f's_add_u32 s{sT0}, s{sT0}, s{sW}', f's_lshl_b32 s{sT0}, s{sT0}, 6', f's_add_u32 s{sT0}, s{sT0}, {WS_DBG}', 's_mov_b64 exec, 0xffff',
              f'v_lshlrev_b32 v{t}, 2, v{L}', f'buffer_store_dword v0, v{t}, {SWS}, s{sT0} offen']
        sg.extend(o)
```

```python
import re

A0 = 256
S0 = 1000
VCC = S0 + 106
M0 = S0 + 124
EXEC = S0 + 126
SCC = 1300

_reg = re.compile(r'^(-|\|)?([vas])(\d+)\|?$')
_rng = re.compile(r'^(-)?([vas])\[(\d+):(\d+)\]$')

def regs_of(tok):
    tok = tok.strip()
    m = _reg.match(tok)
    if m:
        b = {'v': 0, 'a': A0, 's': S0}[m.group(2)]
        return {b + int(m.group(3))}
    m = _rng.match(tok)
    if m:
        b = {'v': 0, 'a': A0, 's': S0}[m.group(2)]
        return set(range(b + int(m.group(3)), b + int(m.group(4)) + 1))
    if tok == 'vcc': return {VCC, VCC + 1}
    if tok == 'vcc_lo': return {VCC}
    if tok == 'm0': return {M0}
    if tok == 'exec': return {EXEC, EXEC + 1}
    return set()

TRANS = ('v_exp_f32', 'v_rcp_f32', 'v_rsq_f32', 'v_log_f32', 'v_sqrt_f32')
NODST_S = ('s_cmp', 's_waitcnt', 's_barrier', 's_branch', 's_cbranch', 's_nop', 's_endpgm', 's_setprio', 's_sleep', 's_bitcmp')

class I:
    __slots__ = ('text', 'op', 'kind', 'wr', 'rd', 'srcC', 'srcAB', 'tok', 'cost', 'wide', 'data')
    def __init__(self, text, tok=None):
        self.text = text; self.tok = tok
        self.wr = set(); self.rd = set(); self.srcC = set(); self.srcAB = set(); self.wide = False; self.data = set()
        t = text.split(';')[0].strip()
        if t.endswith(':'):
            self.op = 'label'; self.kind = 'label'; self.cost = 0; return
        if t.startswith('.'):
            self.op = 'directive'; self.kind = 'directive'; self.cost = 0; return
        sp = t.split(None, 1)
        op = sp[0]; self.op = op
        rest = sp[1] if len(sp) > 1 else ''
        args = [a.strip() for a in re.split(r',(?![^\[]*\])', rest)] if rest else []
        mods = ''
        if args:
            parts = args[-1].split()
            if len(parts) > 1:
                args[-1] = parts[0]; mods = ' '.join(parts[1:])
        base = re.sub(r'_(e32|e64|dpp|sdwa)$', '', op)
        mo = re.search(r'offset:(-?\d+)', t)
        if mo:
            lim = 4095 if op.startswith('buffer_') else 65535
            assert 0 <= int(mo.group(1)) <= lim, 'offset out of range: ' + text
        self.cost = 1
        R = lambda i: regs_of(args[i]) if i < len(args) else set()
        allr = lambda s: set().union(*[regs_of(a) for a in args[s:]]) if len(args) > s else set()
        if op == 'WAIT':
            self.kind = 'waittok'; self.cost = 0; self.tok = rest.strip(); return
        if op.startswith('v_mfma'):
            self.kind = 'mfma32' if '32x32' in op else 'mfma16'
            self.wr = R(0); self.srcAB = R(1) | R(2); self.srcC = R(3); self.rd = self.srcAB | self.srcC; self.cost = 2
        elif op.startswith('v_'):
            self.kind = 'valu'
            self.wr = R(0); self.rd = allr(1)
            if base in TRANS: self.kind = 'trans'; self.cost = 2
            elif base.startswith('v_pk_'): self.kind = 'pk'
            elif base.startswith('v_dot2'): self.kind = 'dot'; self.rd |= self.wr
            elif base.startswith('v_permlane'): self.kind = 'perm'; self.wr = R(0) | R(1); self.rd = R(0) | R(1); self.cost = 2
            elif base in ('v_readfirstlane_b32', 'v_readlane_b32'): self.kind = 'rdlane'
            elif base == 'v_writelane_b32': self.rd |= self.wr
            if base in ('v_fmac_f32',): self.rd |= self.wr
            if op.endswith('_dpp') or 'row_' in mods or 'quad_perm' in mods: self.kind = 'dpp'; self.rd |= self.wr
            self.rd |= {EXEC, EXEC + 1}
        elif op.startswith('ds_read') :
            self.kind = 'ds_rd'; self.wr = R(0); self.rd = allr(1)
        elif op.startswith('ds_'):
            self.kind = 'ds_wr'; self.rd = allr(0)
        elif op.startswith('buffer_load'):
            if re.search(r'\blds\b', mods):
                self.kind = 'vm_dma'; self.rd = allr(0) | {M0}
            else:
                self.kind = 'vm_ld'; self.wr = R(0); self.rd = allr(1)
        elif op.startswith('buffer_store') or op.startswith('buffer_atomic'):
            self.kind = 'vm_st'; self.rd = allr(0); self.data = R(0); self.wide = op.endswith('x4') or op.endswith('x3')
        elif op.startswith('s_load') or op.startswith('s_mem') or op.startswith('s_buffer_load'):
            self.kind = 'smem'; self.wr = R(0); self.rd = allr(1)
        elif op == 's_waitcnt': self.kind = 'wait'
        elif op == 's_barrier': self.kind = 'barrier'
        elif op == 's_nop': self.kind = 'nop'
        elif op.startswith('s_branch') or op.startswith('s_cbranch') or op == 's_endpgm': self.kind = 'branch'
        elif op.startswith('s_'):
            self.kind = 'salu'
            if op.startswith(NODST_S): self.rd = allr(0)
            else: self.wr = R(0); self.rd = allr(1)
        else:
            raise ValueError('unknown instruction: ' + text)
    def states(self):
        if self.kind == 'nop': return int(self.text.split()[1], 0) + 1
        if self.kind in ('label', 'directive', 'waittok'): return 0
        return 1
    def __repr__(self): return self.text

VALUISH = ('valu', 'trans', 'pk', 'dot', 'perm', 'rdlane', 'dpp')
isv = lambda r: r < S0
def vset(s): return {r for r in s if r < S0}
def sset(s): return {r for r in s if S0 <= r < SCC}

def need_states(p, c):
    n = 0
    pk, ck = p.kind, c.kind
    if pk in VALUISH:
        w = vset(p.wr); sw = sset(p.wr)
        if ck in ('mfma32', 'mfma16') and w & c.rd: n = max(n, 2)
        if ck == 'perm' and w & c.rd: n = max(n, 2)
        if ck == 'dpp' and w & c.rd: n = max(n, 2)
        if ck == 'rdlane' and w & c.rd: n = max(n, 1)
        if pk == 'trans' and ck in VALUISH and ck != 'trans' and w & c.rd: n = max(n, 1)
        if pk == 'trans' and ck == 'trans' and w & c.rd: n = max(n, 1)
        if pk == 'dot':
            if ck == 'dot':
                if w & (c.rd - c.wr): n = max(n, 3)
            elif w & (c.rd | c.wr): n = max(n, 3)
        if sw:
            if ck in VALUISH and sw & c.rd: n = max(n, 2 if ck != 'rdlane' else 4)
            if ck.startswith('vm_') and sw & c.rd: n = max(n, 5)
            if ck in ('salu', 'branch') and sw & (c.rd | ({VCC, VCC+1} if 'vcc' in c.op else set())): n = max(n, 1)
    if pk in ('mfma32', 'mfma16'):
        big = pk == 'mfma32'
        w = p.wr
        if ck in ('mfma32', 'mfma16'):
            if w & c.srcAB: n = max(n, 12 if big else 8)
            if w & c.srcC:
                if not (ck == pk and c.srcC == w): n = max(n, 10 if big else 6)
            elif w & c.wr: n = max(n, 12 if big else 8)
        elif ck in VALUISH or ck in ('ds_rd', 'ds_wr', 'vm_ld', 'vm_st', 'vm_dma'):
            if w & (c.rd | c.wr): n = max(n, 12 if big else 8)
        if ck in VALUISH and p.srcC & c.wr: n = max(n, 7 if big else 3)
    if pk == 'salu' and M0 in p.wr and ck == 'vm_dma': n = max(n, 1)
    if pk == 'vm_st' and p.wide and p.data & c.wr:
        n = max(n, 2 if ck in VALUISH else 1)
    return n

class Seg:
    def __init__(self, vmq=None, hist=None):
        self.out = []
        self.vmq = list(vmq or [])
        self.lgq = []; self.smq = set()
        self.hist = list(hist or [])
        self.nstall = 0
    def _emit(self, ins):
        need = 0; dist = 0
        for p in reversed(self.hist):
            if dist >= 20: break
            k = need_states(p, ins)
            if k > dist: need = max(need, k - dist)
            dist += p.states()
        while need > 0:
            k = min(need, 16)
            nop = I(f's_nop {k-1}'); self.out.append(nop); self.hist.append(nop); need -= k; self.nstall += k
        self.out.append(ins); self.hist.append(ins)
        if len(self.hist) > 64: self.hist = self.hist[-40:]
    def _wait(self, vm=None, lg=None):
        parts = []
        if vm is not None:
            vm = min(vm, 63); parts.append(f'vmcnt({vm})'); self.vmq = self.vmq[len(self.vmq) - vm:] if vm else []
        if lg is not None:
            lg = min(lg, 15); parts.append(f'lgkmcnt({lg})'); self.lgq = self.lgq[len(self.lgq) - lg:] if lg else []
            if lg == 0: self.smq = set()
        self._emit(I('s_waitcnt ' + ' '.join(parts)))
    def add(self, ins):
        if isinstance(ins, str): ins = I(ins)
        k = ins.kind
        if k == 'waittok':
            vm = lg = None
            toks = ins.tok.split()
            for i, (t, _) in enumerate(self.vmq):
                if t in toks: vm = len(self.vmq) - 1 - i
            for i, (t, _) in enumerate(self.lgq):
                if t in toks: lg = len(self.lgq) - 1 - i
            if vm is not None or lg is not None: self._wait(vm, lg)
            return
        if k == 'wait':
            m = re.search(r'vmcnt\((\d+)\)', ins.text); vm = int(m.group(1)) if m else None
            m = re.search(r'lgkmcnt\((\d+)\)', ins.text); lg = int(m.group(1)) if m else None
            if vm is not None: self.vmq = self.vmq[max(0, len(self.vmq) - vm):] if vm else []
            if lg is not None: self.lgq = self.lgq[max(0, len(self.lgq) - lg):] if lg else []
            if lg == 0: self.smq = set()
            self._emit(ins); return
        touch = ins.rd | ins.wr
        vm = lg = None
        for i, (t, d) in enumerate(self.vmq):
            if d & touch: vm = len(self.vmq) - 1 - i
        for i, (t, d) in enumerate(self.lgq):
            if d & touch: lg = len(self.lgq) - 1 - i
        if self.smq & touch: lg = 0
        if vm is not None or lg is not None: self._wait(vm, lg)
        self._emit(ins)
        if k in ('vm_ld', 'vm_st', 'vm_dma'): self.vmq.append((ins.tok, set(ins.wr)))
        elif k in ('ds_rd', 'ds_wr'): self.lgq.append((ins.tok, set(ins.wr)))
        elif k == 'smem':
            if ins.tok == 'async': self.smq |= ins.wr
            else: self._wait(None, 0)
    def extend(self, lst):
        for x in flat(lst): self.add(x)
    def text(self):
        return '\n'.join(('' if x.kind == 'label' else '  ') + x.text for x in self.out)

def T(text, tok): return I(text, tok)
def PF(text):
    i = I(text); i.wr = set(); return i

def zipm(a, b):
    a = list(a); b = list(b)
    if not a: return b
    out = []; nb = 0
    for i, x in enumerate(a):
        out.append(x)
        want = (i + 1) * len(b) // len(a)
        out += b[nb:want]; nb = want
    return out

def merge(main, fill, budget=6.0, start=0):
    mk = lambda x: I(x) if isinstance(x, str) else x
    main = [mk(x) for x in main]
    fill = [[mk(y) for y in x] if isinstance(x, list) else [mk(x)] for x in fill]
    cost = [sum(y.cost for y in x) for x in fill]
    out = []; fi = 0; nm = 0; i = 0; debt = 0.0
    while i < len(main):
        ins = main[i]; out.append(ins); i += 1
        if ins.kind in ('mfma32', 'mfma16'):
            used = 0
            while i < len(main) and main[i].kind not in ('mfma32', 'mfma16'):
                out.append(main[i]); used += main[i].cost; i += 1
            nm += 1
            if nm > start:
                b = (budget if ins.kind == 'mfma32' else budget / 3) - debt; debt = 0.0
                while fi < len(fill) and (used + cost[fi] <= b + 1e-9 or (cost[fi] > 3 and used + 2 <= b)):
                    out += fill[fi]; used += cost[fi]; fi += 1
    rest = [y for x in fill[fi:] for y in ([x] if len(x) > 1 else x)]
    return out, rest
def flat(l):
    o = []
    for x in l:
        if isinstance(x, list): o += flat(x)
        else: o.append(x)
    return o
```

```python
from common import *
import gen2_p1 as P1, gen2_p23 as P23
def build():
    head = Seg()
    head._emit(I('s_cmp_ge_u32 s2, 256')); head._emit(I('s_cbranch_scc1 END'))
    if STAMPS: head._emit(I('s_memrealtime s[98:99]'))
    head._emit(I('s_load_dwordx16 s[48:63], s[0:1], 0')); head._emit(I('s_load_dwordx4 s[64:67], s[0:1], 64')); head._emit(I('s_load_dwordx2 s[68:69], s[0:1], 80'))
    head.extend(P1.prologue())
    head.extend(['s_waitcnt lgkmcnt(0)'] + P1.rot_setup() + srd(SX, 48, 2048*1024) + srd(SWS, 68, WS_SIZE) + srd(SWI, 56, 512*2752) + srd(SWA, 50, 512*3072))
    txt = [head.text()]
    if STAMPS: txt.append('  v_mov_b32 v0, s98')
    txt.append(f'  s_cmp_ge_u32 s{sG}, 12\n  s_cbranch_scc1 PROG_C\n  s_cmp_ge_u32 s{sG}, 8\n  s_cbranch_scc1 PROG_B')
    for prog in 'BAC'[1:2] + 'BC':
        sg = P1.phase1(prog)
        txt.append(f'PROG_{prog}:\n' + sg.text())
        txt.append('  s_branch PHASE2' if prog != 'C' else f'  s_cmp_eq_u32 s{sJ}, 7\n  s_cbranch_scc1 LIGHT')
    sg = Seg(vmq=[(None, set())]); sg.extend(['PHASE2:'])
    P23.gemm2_main(sg)
    sg.extend(['PHASE3:'])
    lt = Seg(vmq=[(None, set())]); lt.extend(['LIGHT:']); P23.gemm2_light(lt)
    lt.extend(['s_waitcnt vmcnt(0) lgkmcnt(0)', 's_branch PHASE3'])
    P23.phase3(sg)
    txt += [sg.text(), 'END:\n  s_endpgm', lt.text()] + slow_blocks + ['  s_endpgm\nCODE_END:']
    body = '\n'.join(txt)
    if env('ALIGN', 1):
        import align; body = align.align('KSTART:\n' + body, env('ALNOP', 1))[len('KSTART:\n'):]
    hdr = open('recurrent_scan__linear_attn_block__mixer_gmlp__prompt.s.ref').read().split('; Override launch')[0]
    return hdr + f'''; @launch grid=(256,1,1) block=(256,1,1) lds={LDS_BYTES}
.amdgcn_target "amdgcn-amd-amdhsa--gfx950"
.text
.globl {NAME}
.p2align 8
.type {NAME},@function
{NAME}:
KSTART:
{body}
.section .rodata,"a"
.p2align 6
.amdhsa_kernel {NAME}
  .amdhsa_next_free_vgpr 512
  .amdhsa_next_free_sgpr 102
  .amdhsa_accum_offset 256
  .amdhsa_group_segment_fixed_size 0
  .amdhsa_kernarg_size 88
  .amdhsa_user_sgpr_count 2
  .amdhsa_user_sgpr_kernarg_segment_ptr 1
  .amdhsa_system_sgpr_workgroup_id_x 1
.end_amdhsa_kernel
'''
if __name__ == '__main__':
    out = sys.argv[1] if len(sys.argv) > 1 else 'recurrent_scan__linear_attn_block__mixer_gmlp__prompt.s'
    open(out, 'w').write(build())
```

```python
from common import *
import gen2_p1 as P1, gen2_p23 as P23
def build():
    head = Seg()
    head._emit(I('s_cmp_ge_u32 s2, 256')); head._emit(I('s_cbranch_scc1 END'))
    if STAMPS or env('DIAG', 0): head._emit(I('s_memrealtime s[98:99]')); head._emit(I('s_memtime s[96:97]'))
    head._emit(I('s_load_dwordx16 s[48:63], s[0:1], 0')); head._emit(I('s_load_dwordx4 s[64:67], s[0:1], 64')); head._emit(I('s_load_dwordx2 s[68:69], s[0:1], 80'))
    head.extend(P1.prologue())
    head.extend(['s_waitcnt lgkmcnt(0)'] + P1.rot_setup() + srd(SX, 48, 2048*1024) + srd(SWS, 68, WS_SIZE) + srd(SWI, 56, 512*2752) + srd(SWA, 50, 512*3072))
    txt = [head.text()]
    if STAMPS or env('DIAG', 0): txt.append('  v_mov_b32 v0, s98\n  v_writelane_b32 v0, s96, 15\n  v_writelane_b32 v0, s66, 16\n  v_writelane_b32 v0, s67, 17')
    txt.append(f'  s_cmp_ge_u32 s{sG}, 12\n  s_cbranch_scc1 PROG_C\n  s_cmp_ge_u32 s{sG}, 8\n  s_cbranch_scc1 PROG_B')
    for prog in 'BAC'[1:2] + 'BC':
        sg = P1.phase1(prog)
        txt.append(f'PROG_{prog}:\n' + sg.text())
        txt.append('  s_branch PHASE2' if prog != 'C' else f'  s_cmp_eq_u32 s{sJ}, 7\n  s_cbranch_scc1 LIGHT')
    sg = Seg(vmq=[(None, set())]); sg.extend(['PHASE2:'])
    P23.gemm2_main(sg)
    sg.extend(['PHASE3:'])
    lt = Seg(vmq=[(None, set())]); lt.extend(['LIGHT:']); P23.gemm2_light(lt)
    lt.extend(['s_waitcnt vmcnt(0) lgkmcnt(0)', 's_branch PHASE3'])
    P23.phase3(sg)
    if env('DIAG', 0):
        sg.extend(['s_waitcnt vmcnt(0)', I('s_memrealtime s[48:49]'), I('s_memtime s[90:91]'), 's_mov_b32 s88, s48', 'v_readlane_b32 s92, v0, 0', 'v_readlane_b32 s93, v0, 15',
          's_sub_u32 s88, s88, s92', 's_sub_u32 s90, s90, s93',
          'v_mov_b32 v4, s92', 'v_mov_b32 v5, s88', 'v_mov_b32 v6, s90', 's_and_b32 s93, s2, 63', 's_or_b32 s93, s93, s44', 's_lshr_b32 s92, s2, 6', 's_mul_i32 s92, s92, 12', 's_add_u32 s92, s92, 4',
          's_cmp_eq_u32 s93, 0', 's_cselect_b32 s92, s92, 0x1000', 's_mov_b64 exec, 1', 'buffer_store_dwordx3 v[4:6], off, s[40:43], s92'])
    txt += [sg.text(), 'END:\n  s_endpgm', lt.text()] + slow_blocks + ['  s_endpgm\nCODE_END:']
    body = '\n'.join(txt)
    if env('ALIGN', 1):
        import align; body = align.align('KSTART:\n' + body, env('ALNOP', 1))[len('KSTART:\n'):]
    hdr = open('recurrent_scan__linear_attn_block__mixer_gmlp__prompt.s.ref').read().split('; Override launch')[0]
    return hdr + f'''; @launch grid=(256,1,1) block=(256,1,1) lds={LDS_BYTES}
.amdgcn_target "amdgcn-amd-amdhsa--gfx950"
.text
.globl {NAME}
.p2align 8
.type {NAME},@function
{NAME}:
KSTART:
{body}
.section .rodata,"a"
.p2align 6
.amdhsa_kernel {NAME}
  .amdhsa_next_free_vgpr 512
  .amdhsa_next_free_sgpr 102
  .amdhsa_accum_offset 256
  .amdhsa_group_segment_fixed_size 0
  .amdhsa_kernarg_size 88
  .amdhsa_user_sgpr_count 2
  .amdhsa_user_sgpr_kernarg_segment_ptr 1
  .amdhsa_system_sgpr_workgroup_id_x 1
.end_amdhsa_kernel
'''
if __name__ == '__main__':
    out = sys.argv[1] if len(sys.argv) > 1 else 'recurrent_scan__linear_attn_block__mixer_gmlp__prompt.s'
    open(out, 'w').write(build())
```
